```python
import torch

def _softmax(x, axis=-1):
    return torch.softmax(x, dim=axis)

def _gelu(x):
    return torch.nn.functional.gelu(x, approximate='tanh')

def _silu(x):
    return torch.nn.functional.silu(x)

def _sigmoid(x):
    return torch.sigmoid(x)

def _layernorm(x, axis=-1, eps=1e-05):
    m = x.mean(dim=axis, keepdim=True)
    v = x.var(dim=axis, keepdim=True, unbiased=False)
    return (x - m) / torch.sqrt(v + eps)

def _scatter_add(tgt, idx, src, axis=0):
    return tgt.clone().index_add_(axis, idx, src)

def _segment_sum(src, seg, n):
    out = torch.zeros((n,) + src.shape[1:], dtype=src.dtype)
    return out.index_add_(0, seg, src)

def _pad(x, pw):
    flat = tuple((v for pair in reversed(pw) for v in pair))
    return torch.nn.functional.pad(x, flat)
kernel_name = 'gather_scatter__tensor_product_equiv_tfn__graph'

def setup_inputs():

    _w = lambda a: (lambda t: t.to(torch.bfloat16) if t.is_floating_point() else t)(torch.as_tensor(a))
    N, deg, C, L, DE = (10000, 16, 128, 1, 16)
    E = N * deg
    M = (L + 1) ** 2
    src = (lambda lo, hi, *s: torch.randint(lo, hi, s))(0, N, E).to(torch.int64)
    dst = (lambda lo, hi, *s: torch.randint(lo, hi, s))(0, N, E).to(torch.int64)
    r = (lambda *s: torch.randn(*s, dtype=torch.bfloat16) * 0.05)(E, 3)
    r = r / (torch.linalg.norm(r, dim=-1, keepdim=True) + 1e-09)
    rx, ry, rz = (r[:, 0].clone(), r[:, 1].clone(), r[:, 2].clone())
    Ys = [torch.ones((E, 1), dtype=float)]
    if L >= 1:
        Ys.append(r.to(float))
    if L >= 2:
        Ys.append(torch.stack([2 * rx * ry, 2 * ry * rz, (3 * rz * rz - 1.0) / (lambda _x: torch.sqrt(torch.as_tensor(_x)))(3.0), 2 * rx * rz, rx * rx - ry * ry], dim=-1).to(float))
    for _l in range(3, L + 1):
        Ys.append(((lambda *s: torch.randn(*s, dtype=torch.bfloat16) * 0.05)(E, 2 * _l + 1) * 0.3).to(float))
    Y = torch.cat(Ys, dim=-1)
    cg = torch.zeros((M, M, M), dtype=float)
    off = [_l * _l for _l in range(L + 2)]
    for l1 in range(L + 1):
        for l2 in range(L + 1):
            for l3 in range(abs(l1 - l2), min(L, l1 + l2) + 1):
                d1, d2, d3 = (2 * l1 + 1, 2 * l2 + 1, 2 * l3 + 1)
                cg[off[l1]:off[l1 + 1], off[l2]:off[l2 + 1], off[l3]:off[l3 + 1]] = (lambda *s: torch.randn(*s, dtype=torch.bfloat16) * 0.05)(d1, d2, d3) / (lambda _x: torch.sqrt(torch.as_tensor(_x)))(float(d1 * d2))
    return {'x': _w((lambda *s: torch.randn(*s, dtype=torch.bfloat16) * 0.05)(N, C, M) * 0.2), 'src': _w(src), 'dst': _w(dst), 'Y': _w(Y), 'edge_feat': _w((lambda *s: torch.randn(*s, dtype=torch.bfloat16) * 0.05)(E, DE)), 'w_rad': _w((lambda *s: torch.randn(*s, dtype=torch.bfloat16) * 0.05)(DE, C) * (1.0 / max(1.0, DE) ** 0.5)), 'cg': _w(cg), 'w_mix': _w((lambda *s: torch.randn(*s, dtype=torch.bfloat16) * 0.05)(C, C) * (1.0 / max(1.0, C) ** 0.5))}

def reference(x, src, dst, Y, edge_feat, w_rad, cg, w_mix):
    N, C, M = (x.shape[0], x.shape[1], x.shape[2])
    R = _silu(edge_feat @ w_rad)
    xs = x[src]
    tp = torch.einsum('eci,ef,ifo->eco', xs, Y, cg)
    msg = R[:, :, None] * tp
    agg = _segment_sum(msg.reshape(-1, C * M), dst, N).reshape(N, C, M)
    return torch.einsum('ncm,cd->ndm', agg, w_mix)
```

```python
import sys

N, E, C = 10000, 160000, 128
NB = 250
NPB = 40
NCH = 250
CH = 640
OFFS = 0
RECS = 0x40000
WS_USED = RECS + E * 16

K1 = "bin_edges_kernel"
K2 = "gather_scatter__tensor_product_equiv_tfn__graph_kernel"

class A:
    def __init__(self):
        self.L = []
    def __call__(self, s):
        for line in s.strip("\n").split("\n"):
            self.L.append(line)
    def text(self):
        return "\n".join(self.L) + "\n"

def srd(a, r, lo, size):
    a(f"  s_mov_b32 s{r}, s{lo}\n  s_mov_b32 s{r+1}, s{lo+1}\n  s_mov_b32 s{r+2}, {size}\n  s_mov_b32 s{r+3}, 0x20000")

def wave_scan(a, v):
    for ctl in ("row_shr:1", "row_shr:2", "row_shr:4", "row_shr:8"):
        a(f"  s_nop 1\n  v_add_u32_dpp v{v}, v{v}, v{v} {ctl} row_mask:0xf bank_mask:0xf bound_ctrl:0")
    a(f"  s_nop 1\n  v_add_u32_dpp v{v}, v{v}, v{v} row_bcast:15 row_mask:0xa bank_mask:0xf")
    a(f"  s_nop 1\n  v_add_u32_dpp v{v}, v{v}, v{v} row_bcast:31 row_mask:0xc bank_mask:0xf")

def kd(name, nv, ns, extra=""):
    acc = min((nv + 3) // 4 * 4, 256)
    return f""".amdhsa_kernel {name}
  .amdhsa_next_free_vgpr {nv}
  .amdhsa_next_free_sgpr {ns}
  .amdhsa_accum_offset {acc}
  .amdhsa_group_segment_fixed_size 0
  .amdhsa_kernarg_size 88
  .amdhsa_user_sgpr_count 2
  .amdhsa_user_sgpr_kernarg_segment_ptr 1
  .amdhsa_system_sgpr_workgroup_id_x 1
  .amdhsa_float_denorm_mode_32 3
{extra}.end_amdhsa_kernel"""

def gen_k1(a):
    a(f".globl {K1}\n.p2align 8\n.type {K1},@function\n{K1}:")
    a(f"  s_cmp_ge_u32 s2, {NCH}\n  s_cbranch_scc1 L1_end")
    a("  s_load_dwordx4 s[4:7], s[0:1], 8")
    a("  s_load_dwordx2 s[8:9], s[0:1], 24")
    a("  s_load_dwordx2 s[10:11], s[0:1], 80")
    a("  v_lshlrev_b32 v1, 2, v0")
    a("  v_mov_b32 v2, 0")
    a("  v_lshrrev_b32 v21, 6, v0")
    a("  v_cmp_gt_u32 vcc, 256, v0")
    a("  s_and_saveexec_b64 s[12:13], vcc")
    a("  ds_write_b32 v1, v2")
    a("  s_mov_b64 exec, s[12:13]")
    a(f"  s_mul_i32 s14, s2, {CH}")
    a("  v_add_u32 v3, s14, v0")
    a("  v_readfirstlane_b32 s15, v21")
    a("  v_lshlrev_b32 v4, 2, v3")
    a("  v_lshlrev_b32 v5, 3, v3")
    a("  s_waitcnt lgkmcnt(0)")
    srd(a, 16, 4, E * 4)
    srd(a, 20, 6, E * 4)
    srd(a, 24, 8, E * 8)
    srd(a, 28, 10, WS_USED)
    a("  buffer_load_dword v6, v4, s[20:23], 0 offen")
    a("  buffer_load_dword v7, v4, s[16:19], 0 offen")
    a("  buffer_load_dwordx2 v[10:11], v5, s[24:27], 0 offen")
    a("  s_barrier")
    a("  s_waitcnt vmcnt(2)")
    a("  v_mul_u32_u24 v12, 52429, v6")
    a("  v_lshrrev_b32 v12, 21, v12")
    a("  v_min_u32 v12, 255, v12")
    a("  v_lshlrev_b32 v16, 2, v12")
    a("  v_mov_b32 v17, 1")
    a("  ds_add_rtn_u32 v18, v16, v17")
    a("  v_mul_u32_u24 v13, 40, v12")
    a("  v_sub_u32 v13, v6, v13")
    a("  v_mul_u32_u24 v14, 52, v13")
    a("  v_lshrrev_b32 v14, 8, v14")
    a("  v_mul_u32_u24 v15, 5, v14")
    a("  v_sub_u32 v15, v13, v15")
    a("  v_lshlrev_b32 v14, 7, v14")
    a("  v_lshl_or_b32 v14, v15, 3, v14")
    a("  v_lshlrev_b32 v9, 5, v3")
    a("  s_waitcnt vmcnt(1)")
    a("  v_lshl_or_b32 v8, v7, 10, v14")
    a("  s_waitcnt lgkmcnt(0)")
    a("  s_barrier")
    a("  s_cmp_lg_u32 s15, 0\n  s_cbranch_scc1 L1_noscan")
    a("  v_lshlrev_b32 v19, 4, v0")
    a("  ds_read_b128 v[24:27], v19")
    a("  s_waitcnt lgkmcnt(0)")
    a("  v_add_u32 v28, v24, v25")
    a("  v_add_u32 v29, v28, v26")
    a("  v_add_u32 v30, v29, v27")
    a("  v_mov_b32 v31, v30")
    wave_scan(a, 31)
    a("  v_sub_u32 v32, v31, v30")
    a("  v_add_u32 v33, v32, v24")
    a("  v_add_u32 v34, v32, v28")
    a("  v_add_u32 v35, v32, v29")
    a("  ds_write_b128 v19, v[32:35] offset:1024")
    a("  v_lshl_or_b32 v36, v24, 16, v32")
    a("  v_lshl_or_b32 v37, v25, 16, v33")
    a("  v_lshl_or_b32 v38, v26, 16, v34")
    a("  v_lshl_or_b32 v39, v27, 16, v35")
    a("  s_lshl_b32 s12, s2, 10")
    a(f"  buffer_store_dwordx4 v[36:39], v19, s[28:31], s12 offen offset:{OFFS}")
    a("  s_waitcnt lgkmcnt(0)")
    a("L1_noscan:")
    a("  s_barrier")
    a("  ds_read_b32 v19, v16 offset:1024")
    a("  s_waitcnt lgkmcnt(0)")
    a("  v_add3_u32 v19, v19, v18, s14")
    a("  v_lshlrev_b32 v19, 4, v19")
    a(f"  s_mov_b32 s12, {RECS}")
    a("  s_waitcnt vmcnt(0)")
    a("  buffer_store_dwordx4 v[8:11], v19, s[28:31], s12 offen")
    a("L1_end:")
    a("  s_endpgm")

L_CNT = 0
L_FLAG = 2048
CAPFILL = 256
CAPW = CAPFILL + 32
L_LIST = 4096
L_WMIX = L_LIST + 8 * CAPW * 16
WM_STRIDE = 288
L_AGG = L_WMIX + 128 * WM_STRIDE
AGG_STRIDE = 1088
LDS2 = L_AGG + 8 * 5 * AGG_STRIDE
DUMMY_W0 = 0x7FFFFC00 | 40
DUMMY_W1 = 0x7FFFFFE0

class V:
    def __init__(self, start=1):
        self.n = start
    def get(self, cnt=1, align=1):
        self.n = (self.n + align - 1) // align * align
        r = self.n
        self.n += cnt
        return r

def gen_k2(a, opt):
    stamps = opt.get("stamps", False)
    NR = 8
    v = V(1)
    vLane = v.get(); vL16 = v.get(); vT0 = v.get(); vT1 = v.get(); vT2 = v.get(); vT3 = v.get()
    vOL = v.get(); vLen = v.get(); vRecOff = v.get(); vJ = v.get()
    vRecA = v.get(); vEidxA = v.get()
    vEIDX = v.get(); vQ8 = v.get(); vW0 = v.get(); vRem = v.get()
    vREC = v.get(4, 4)
    vKP = v.get(2, 2); vKPn = v.get(2, 2); vEF = v.get(2, 2); vEFn = v.get(2, 2)
    vCG = v.get(8, 2)
    vWB = v.get(16, 2)
    vZ = v.get(8, 2); vRR = v.get(8, 2); vT = v.get(8, 2)
    vACC = v.get(48, 4)
    vROW = v.get(32, 4)
    vTP = v.get(32, 4)
    NV = v.n
    pREC = vROW
    pKEY = vTP
    pRANK = vTP + 8
    pW = vTP + 16
    pM = vACC
    pC = vACC + 16
    sX = 8; sWS = 12; sEF = 16; sOUT = 20; sTMP = 24
    sWAVE = 28; sN = 29; sG = 30; sKB = 31; sSTEP = 32; sMAXL = 33; sLISTW = 34; sT0 = 35; sT1 = 36; sFLAG = 37
    sNLOG = 38
    sM = 40
    sW = 56
    sO = 72
    sSAVE = 76
    sP1 = 78; sP2 = 79
    sOFFSRD = 80
    sST = 88
    NS = 100
    def stamp(i):
        if stamps: a(f"  s_memrealtime s[{sST+2*i}:{sST+2*i+1}]")

    a(f".globl {K2}\n.p2align 8\n.type {K2},@function\n{K2}:")
    a(f"  s_cmp_ge_u32 s2, {NB}\n  s_cbranch_scc1 L2_end")
    stamp(0)
    a("  s_load_dwordx2 s[4:5], s[0:1], 0")
    a("  s_load_dwordx2 s[6:7], s[0:1], 80")
    a("  s_load_dwordx4 s[84:87], s[0:1], 32")
    a("  s_load_dwordx4 s[40:43], s[0:1], 48")
    a("  s_load_dwordx2 s[44:45], s[0:1], 64")
    a(f"  v_and_b32 v{vLane}, 63, v0")
    a(f"  v_lshrrev_b32 v{vT0}, 6, v0")
    a(f"  v_lshlrev_b32 v{vL16}, 4, v{vLane}")
    a(f"  v_readfirstlane_b32 s{sWAVE}, v{vT0}")
    a(f"  v_lshlrev_b32 v{vT1}, 2, v0")
    a(f"  v_mov_b32 v{vT2}, 0")
    a(f"  ds_write_b32 v{vT1}, v{vT2} offset:{L_CNT}")
    a(f"  v_cmp_gt_u32 vcc, 16, v0\n  s_and_saveexec_b64 s[{sSAVE}:{sSAVE+1}], vcc")
    a(f"  ds_write_b32 v{vT1}, v{vT2} offset:{L_FLAG}")
    a(f"  s_mov_b64 exec, s[{sSAVE}:{sSAVE+1}]")
    a(f"  v_lshrrev_b32 v{vT0}, 1, v0")
    a(f"  v_and_b32 v{vJ}, 1, v0")
    a(f"  s_lshl_b32 s{sT0}, s2, 2")
    a(f"  v_lshlrev_b32 v{vT3}, 10, v{vT0}")
    a(f"  v_mul_u32_u24 v{vRecOff}, {CH}, v{vT0}")
    a("  s_waitcnt lgkmcnt(0)")
    srd(a, sOFFSRD, 6, NCH * 1024)
    a(f"  buffer_load_dword v{vOL}, v{vT3}, s[{sOFFSRD}:{sOFFSRD+3}], s{sT0} offen")
    srd(a, sX, 4, N * 1024)
    srd(a, sWS, 6, WS_USED)
    srd(a, sEF, 84, E * 32)
    srd(a, sOUT, 44, N * 1024)
    srd(a, sTMP, 42, C * C * 2)
    a(f"  v_lshlrev_b32 v{vT0}, 4, v0")
    for u in range(4):
        a(f"  s_movk_i32 s{sT1}, {u * 8192}")
        a(f"  buffer_load_dwordx4 v[{pM+4*u}:{pM+4*u+3}], v{vT0}, s[{sTMP}:{sTMP+3}], s{sT1} offen")
    srd(a, sOFFSRD, 86, 16 * C * 2)
    a(f"  v_lshlrev_b32 v{vT1}, 2, v{vLane}")
    for k in range(16):
        a(f"  buffer_load_dword v{pW+k}, v{vT1}, s[{sOFFSRD}:{sOFFSRD+3}], 0 offen offset:{k*256}")
    srd(a, sTMP, 40, 128)
    a(f"  v_and_b32 v{vT2}, 3, v{vLane}\n  v_lshlrev_b32 v{vT2}, 1, v{vT2}")
    for i in range(4):
        for f in range(4):
            a(f"  buffer_load_ushort v{pC+4*i+f}, v{vT2}, s[{sTMP}:{sTMP+3}], 0 offen offset:{(i*16+f*4)*2}")
    NAUX = 4 + 16 + 16
    a("  s_barrier")
    a(f"  s_mul_i32 s{sLISTW}, s{sWAVE}, {CAPW*16}\n  s_add_u32 s{sLISTW}, s{sLISTW}, {L_LIST}")
    a(f"  s_mov_b32 s{sNLOG}, 0xbfb8aa3b\n  s_mov_b32 s{sNLOG+1}, 0xbfb8aa3b")
    a(f"  s_mov_b32 s{sP1}, 0x05040100\n  s_mov_b32 s{sP2}, 0x07060302")
    a(f"  v_lshrrev_b32 v{vT1}, 2, v{vLane}\n  v_and_b32 v{vT1}, 3, v{vT1}\n  v_lshlrev_b32 v{vQ8}, 3, v{vT1}")
    a(f"  s_mov_b32 s{sKB}, 0\n  s_mov_b32 s{sSTEP}, {2*NR}")
    a(f"  s_waitcnt vmcnt({NAUX})")
    stamp(1)
    a(f"  v_lshrrev_b32 v{vLen}, 16, v{vOL}")
    a(f"  v_and_b32 v{vOL}, 0xffff, v{vOL}")
    a(f"  v_add3_u32 v{vRecOff}, v{vRecOff}, v{vOL}, v{vJ}")
    a(f"  v_lshlrev_b32 v{vRecOff}, 4, v{vRecOff}")
    a(f"  v_cmp_lt_u32 vcc, {2*NR}, v{vLen}\n  s_and_saveexec_b64 s[{sSAVE}:{sSAVE+1}], vcc")
    a(f"  s_cbranch_execz L2_nomax")
    a(f"  v_mov_b32 v{vT1}, {L_FLAG+4}")
    a(f"  ds_max_u32 v{vT1}, v{vLen}")
    a(f"L2_nomax:")
    a(f"  s_mov_b64 exec, s[{sSAVE}:{sSAVE+1}]")

    def rec_loads():
        a(f"  s_add_u32 s{sT0}, s{sKB}, s{sSTEP}")
        a(f"  v_min_u32 v{vRem}, s{sT0}, v{vLen}")
        a(f"  v_subrev_u32 v{vRem}, s{sKB}, v{vRem}")
        a(f"  v_sub_u32 v{vRem}, v{vRem}, v{vJ}")
        a(f"  s_lshl_b32 s{sT0}, s{sKB}, 4\n  s_add_u32 s{sT0}, s{sT0}, {RECS}")
        for r in range(NR):
            a(f"  v_cmp_lt_i32 s[{sM+2*r}:{sM+2*r+1}], {2*r}, v{vRem}")
        a("  s_nop 3")
        for r in range(NR):
            a(f"  s_cmp_eq_u64 s[{sM+2*r}:{sM+2*r+1}], 0\n  s_cbranch_scc1 L2_ld_done{rec_loads.n}")
            a(f"  s_mov_b64 exec, s[{sM+2*r}:{sM+2*r+1}]")
            a(f"  buffer_load_dwordx4 v[{pREC+4*r}:{pREC+4*r+3}], v{vRecOff}, s[{sWS}:{sWS+3}], s{sT0} offen offset:{32*r}")
        a(f"L2_ld_done{rec_loads.n}:")
        a("  s_mov_b64 exec, -1")
        rec_loads.n += 1
    rec_loads.n = 0

    rec_loads()
    a("  s_waitcnt vmcnt(0)")
    stamp(2)
    a(f"  v_lshrrev_b32 v{vT0}, 4, v0\n  v_mul_u32_u24 v{vT0}, {WM_STRIDE}, v{vT0}")
    a(f"  v_and_b32 v{vT1}, 15, v0\n  v_lshl_add_u32 v{vT0}, v{vT1}, 4, v{vT0}")
    a(f"  v_add_u32 v{vT0}, {L_WMIX}, v{vT0}")
    a("  s_branch L2_pass_first")

    a("L2_pass:")
    rec_loads()
    a("  s_waitcnt vmcnt(0)")
    a("  s_branch L2_pass_keys")
    a("L2_pass_first:")
    for u in range(4):
        a(f"  ds_write_b128 v{vT0}, v[{pM+4*u}:{pM+4*u+3}] offset:{u*32*WM_STRIDE}")
    for q in range(4):
        for t in range(2):
            sel = sP1 if t == 0 else sP2
            b = vWB + (q * 2 + t) * 2
            a(f"  v_perm_b32 v{b}, v{pW+4*q+1}, v{pW+4*q}, s{sel}")
            a(f"  v_perm_b32 v{b+1}, v{pW+4*q+3}, v{pW+4*q+2}, s{sel}")
    for i in range(4):
        a(f"  v_lshl_or_b32 v{vCG+2*i}, v{pC+4*i+1}, 16, v{pC+4*i}")
        a(f"  v_lshl_or_b32 v{vCG+2*i+1}, v{pC+4*i+3}, 16, v{pC+4*i+2}")
    for r in range(48):
        a(f"  v_mov_b32 v{vACC+r}, 0")
    a("L2_pass_keys:")
    a(f"  v_mov_b32 v{vT3}, 1")
    for r in range(NR):
        a(f"  s_cmp_eq_u64 s[{sM+2*r}:{sM+2*r+1}], 0\n  s_cbranch_scc1 L2_key_done")
        a(f"  s_mov_b64 exec, s[{sM+2*r}:{sM+2*r+1}]")
        w0 = pREC + 4 * r
        a(f"  v_bfe_u32 v{vT0}, v{w0}, 7, 3")
        a(f"  v_lshrrev_b32 v{vT1}, 18, v{w0}")
        a(f"  v_lshlrev_b32 v{vT1}, 2, v{vT1}")
        a(f"  v_lshl_add_u32 v{pKEY+r}, v{vT0}, 8, v{vT1}")
        a(f"  ds_add_rtn_u32 v{pRANK+r}, v{pKEY+r}, v{vT3} offset:{L_CNT}")
    a("L2_key_done:")
    a("  s_mov_b64 exec, -1")
    a("  s_waitcnt lgkmcnt(0)")
    a("  s_barrier")
    a(f"  s_lshl_b32 s{sT0}, s{sWAVE}, 8")
    a(f"  v_lshl_add_u32 v{vT0}, v{vLane}, 2, s{sT0}")
    a(f"  ds_read_b32 v{vT1}, v{vT0} offset:{L_CNT}")
    a("  s_waitcnt lgkmcnt(0)")
    a(f"  v_mov_b32 v{vT2}, v{vT1}")
    wave_scan(a, vT2)
    a(f"  v_sub_u32 v{vT1}, v{vT2}, v{vT1}")
    a(f"  v_readlane_b32 s{sN}, v{vT2}, 63")
    a(f"  ds_write_b32 v{vT0}, v{vT1} offset:{L_CNT}")
    a(f"  s_cmp_gt_u32 s{sN}, {CAPFILL}\n  s_cbranch_scc0 L2_noovf")
    a(f"  v_mov_b32 v{vT0}, {L_FLAG}\n  v_mov_b32 v{vT1}, 1\n  ds_write_b32 v{vT0}, v{vT1}")
    a("  s_branch L2_padded")
    a("L2_noovf:")
    a(f"  s_lshl_b32 s{sT0}, s{sN}, 4\n  s_add_u32 s{sT0}, s{sT0}, s{sLISTW}")
    a(f"  v_add_u32 v{vT0}, s{sT0}, v{vL16}")
    a(f"  v_mov_b32 v{vREC}, {DUMMY_W0}\n  v_mov_b32 v{vREC+1}, {DUMMY_W1}\n  v_mov_b32 v{vREC+2}, 0\n  v_mov_b32 v{vREC+3}, 0")
    a(f"  s_mov_b32 exec_hi, 0")
    a(f"  ds_write_b128 v{vT0}, v[{vREC}:{vREC+3}]")
    a(f"  s_mov_b64 exec, -1")
    a("L2_padded:")
    a("  s_waitcnt lgkmcnt(0)")
    a("  s_barrier")
    a(f"  v_mov_b32 v{vT0}, {L_FLAG}")
    a(f"  ds_read_b64 v[{vKPn}:{vKPn+1}], v{vT0}")
    for r in range(NR):
        a(f"  s_cmp_eq_u64 s[{sM+2*r}:{sM+2*r+1}], 0\n  s_cbranch_scc1 L2_base_done")
        a(f"  s_mov_b64 exec, s[{sM+2*r}:{sM+2*r+1}]")
        a(f"  ds_read_b32 v{pW+r}, v{pKEY+r} offset:{L_CNT}")
    a("L2_base_done:")
    a("  s_mov_b64 exec, -1")
    a("  s_waitcnt lgkmcnt(0)")
    a(f"  v_readfirstlane_b32 s{sFLAG}, v{vKPn}")
    a(f"  v_readfirstlane_b32 s{sMAXL}, v{vKPn+1}")
    a(f"  s_cmp_lg_u32 s{sFLAG}, 0\n  s_cbranch_scc1 L2_overflow")
    for r in range(NR):
        a(f"  s_cmp_eq_u64 s[{sM+2*r}:{sM+2*r+1}], 0\n  s_cbranch_scc1 L2_scat_done")
        a(f"  s_mov_b64 exec, s[{sM+2*r}:{sM+2*r+1}]")
        w0 = pREC + 4 * r
        a(f"  v_lshrrev_b32 v{vT0}, 8, v{pKEY+r}")
        a(f"  v_mul_u32_u24 v{vT0}, {CAPW*16}, v{vT0}")
        a(f"  v_add_u32 v{vT1}, v{pW+r}, v{pRANK+r}")
        a(f"  v_lshl_add_u32 v{vT0}, v{vT1}, 4, v{vT0}")
        a(f"  v_and_b32 v{w0}, 0xfffffc7f, v{w0}")
        a(f"  ds_write_b128 v{vT0}, v[{w0}:{w0+3}] offset:{L_LIST}")
    a("L2_scat_done:")
    a("  s_mov_b64 exec, -1")
    a("  s_waitcnt lgkmcnt(0)")
    a("  s_barrier")
    stamp(3)

    def kcompute(dst):
        for i in range(4):
            a(f"  v_dot2_f32_bf16 v{vT+i}, v{vREC+3}, v{vCG+2*i+1}, 0")
        for i in range(4):
            a(f"  v_dot2_f32_bf16 v{vT+i}, v{vREC+2}, v{vCG+2*i}, v{vT+i}")
        a("  s_nop 2")
        a(f"  v_cvt_pk_bf16_f32 v{dst}, v{vT}, v{vT+1}")
        a(f"  v_cvt_pk_bf16_f32 v{dst+1}, v{vT+2}, v{vT+3}")
    def rmfma(ef, grp, q, t):
        c = "0" if q == 0 else f"v[{vZ+4*t}:{vZ+4*t+3}]"
        b = vWB + (q * 2 + t) * 2
        a(f"  v_mfma_f32_4x4x4_16b_bf16 v[{vZ+4*t}:{vZ+4*t+3}], v[{ef}:{ef+1}], v[{b}:{b+1}], {c} cbsz:4 abid:{4*grp+q}")
    def rowload(slot, so):
        a(f"  buffer_load_dwordx4 v[{vROW+4*slot}:{vROW+4*slot+3}], v{vL16}, s[{sX}:{sX+3}], s{so} offen")

    a(f"  s_cmp_eq_u32 s{sN}, 0\n  s_cbranch_scc1 L2_loop_exit")
    a(f"  s_add_u32 s{sG}, s{sN}, 3\n  s_lshr_b32 s{sG}, s{sG}, 2")
    a(f"  v_lshrrev_b32 v{vT0}, 2, v{vLane}\n  v_lshlrev_b32 v{vT0}, 4, v{vT0}\n  v_add_u32 v{vRecA}, s{sLISTW}, v{vT0}")
    a(f"  v_lshrrev_b32 v{vT0}, 4, v{vLane}\n  v_lshlrev_b32 v{vT0}, 2, v{vT0}\n  v_and_b32 v{vT1}, 3, v{vLane}")
    a(f"  v_add_u32 v{vT0}, v{vT0}, v{vT1}\n  v_lshlrev_b32 v{vT0}, 4, v{vT0}\n  v_add_u32 v{vEidxA}, s{sLISTW}, v{vT0}")
    a(f"  ds_read_b128 v[{vREC}:{vREC+3}], v{vRecA}")
    a(f"  ds_read_b32 v{vEIDX}, v{vEidxA} offset:4")
    a("  s_waitcnt lgkmcnt(0)")
    a(f"  v_add_u32 v{vT0}, v{vEIDX}, v{vQ8}")
    a(f"  buffer_load_dwordx2 v[{vEF}:{vEF+1}], v{vT0}, s[{sEF}:{sEF+3}], 0 offen")
    a(f"  ds_read_b32 v{vEIDX}, v{vEidxA} offset:{256+4}")
    for j in range(8):
        a(f"  v_readlane_b32 s{sW+j}, v{vREC}, {4*j}")
        a(f"  s_andn2_b32 s{sO}, s{sW+j}, 63")
        rowload(j, sO)
    a(f"  v_mov_b32 v{vW0}, v{vREC}")
    kcompute(vKP)
    a(f"  v_add_u32 v{vRecA}, 256, v{vRecA}")
    a(f"  v_add_u32 v{vEidxA}, 512, v{vEidxA}")
    a("  s_waitcnt vmcnt(8)")
    for q in range(4):
        rmfma(vEF, 0, q, 0); rmfma(vEF, 0, q, 1)
        a("  s_nop 1")
    a("  s_nop 4")
    a("L2_batch:")
    for gi in range(4):
        if gi == 0:
            a("  s_waitcnt lgkmcnt(0)")
            a(f"  ds_read_b128 v[{vREC}:{vREC+3}], v{vRecA}")
        if gi == 1:
            a("  s_waitcnt lgkmcnt(0)")
        for p in range(4):
            a(f"  v_pk_mul_f32 v[{vT+2*p}:{vT+2*p+1}], v[{vZ+2*p}:{vZ+2*p+1}], s[{sNLOG}:{sNLOG+1}]")
        for i in range(8):
            a(f"  v_exp_f32 v{vT+i}, v{vT+i}")
        for p in range(4):
            a(f"  v_pk_add_f32 v[{vT+2*p}:{vT+2*p+1}], v[{vT+2*p}:{vT+2*p+1}], 1.0 op_sel_hi:[1,0]")
        for i in range(8):
            a(f"  v_rcp_f32 v{vT+i}, v{vT+i}")
        for p in range(4):
            a(f"  v_pk_mul_f32 v[{vRR+2*p}:{vRR+2*p+1}], v[{vZ+2*p}:{vZ+2*p+1}], v[{vT+2*p}:{vT+2*p+1}]")
        if gi == 1:
            kcompute(vKPn)
            a(f"  ds_read_b32 v{vEIDX}, v{vEidxA} offset:4")
            a(f"  v_add_u32 v{vEidxA}, 256, v{vEidxA}")
        nset = (gi + 2) % 4
        ef, grp = (vEF, gi + 1) if gi < 3 else (vEFn, 0)
        if gi == 3:
            a("  s_waitcnt vmcnt(4)")
        for q in range(4):
            rmfma(ef, grp, q, 0); rmfma(ef, grp, q, 1)
            src, ln = (vW0, 4 * (4 * (gi + 2) + q)) if gi < 2 else (vREC, 4 * (4 * (gi - 2) + q))
            a(f"  v_readlane_b32 s{sW+4*nset+q}, v{src}, {ln}")
        if gi != 3:
            a(f"  s_waitcnt vmcnt({4 if gi == 0 else 5})")
        for r in range(4):
            sl = (gi % 2) * 4 + r
            for t in range(2):
                a(f"  v_mfma_f32_4x4x4_16b_bf16 v[{vTP+8*r+4*t}:{vTP+8*r+4*t+3}], v[{vKP}:{vKP+1}], v[{vROW+4*sl+2*t}:{vROW+4*sl+2*t+1}], 0 cbsz:4 abid:{4*gi+r}")
        for r in range(4):
            a(f"  s_andn2_b32 s{sO+r}, s{sW+4*nset+r}, 63")
        for r in range(4):
            rowload((gi % 2) * 4 + r, sO + r)
        if gi == 0:
            a(f"  v_add_u32 v{vT0}, v{vEIDX}, v{vQ8}")
            a(f"  buffer_load_dwordx2 v[{vEFn}:{vEFn+1}], v{vT0}, s[{sEF}:{sEF+3}], 0 offen")
        for r in range(4):
            a(f"  s_set_gpr_idx_on s{sW+4*gi+r}, gpr_idx(SRC2,DST)")
            for t in range(2):
                rr = vRR + 4 * t + (r & ~1)
                sel = "op_sel:[0,1,0] op_sel_hi:[1,1,1]" if r & 1 else "op_sel:[0,0,0] op_sel_hi:[1,0,1]"
                for h in range(2):
                    d = vACC + 4 * t + 2 * h
                    tp = vTP + 8 * r + 4 * t + 2 * h
                    a(f"  v_pk_fma_f32 v[{d}:{d+1}], v[{tp}:{tp+1}], v[{rr}:{rr+1}], v[{d}:{d+1}] {sel}")
            a("  s_set_gpr_idx_off")
        if gi == 3:
            a(f"  v_mov_b32 v{vKP}, v{vKPn}\n  v_mov_b32 v{vKP+1}, v{vKPn+1}")
            a(f"  v_mov_b32 v{vEF}, v{vEFn}\n  v_mov_b32 v{vEF+1}, v{vEFn+1}")
            a(f"  v_mov_b32 v{vW0}, v{vREC}")
            a(f"  v_add_u32 v{vRecA}, 256, v{vRecA}")
        a(f"  s_sub_u32 s{sG}, s{sG}, 1")
        a(f"  s_cmp_eq_u32 s{sG}, 0")
        if gi < 3:
            a("  s_cbranch_scc1 L2_loop_exit")
        else:
            a("  s_cbranch_scc0 L2_batch")
    a("L2_loop_exit:")
    a("  s_waitcnt vmcnt(0) lgkmcnt(0)")
    stamp(4)
    a(f"  s_add_u32 s{sKB}, s{sKB}, s{sSTEP}")
    a(f"  s_cmp_lt_u32 s{sKB}, s{sMAXL}")
    a("  s_cbranch_scc0 L2_epilogue")
    a("L2_rezero:")
    a("  s_barrier")
    a(f"  v_lshlrev_b32 v{vT1}, 2, v0\n  v_mov_b32 v{vT2}, 0")
    a(f"  ds_write_b32 v{vT1}, v{vT2} offset:{L_CNT}")
    a(f"  v_mov_b32 v{vT1}, {L_FLAG}\n  ds_write_b32 v{vT1}, v{vT2}")
    a("  s_waitcnt lgkmcnt(0)")
    a("  s_barrier")
    a("  s_branch L2_pass")
    a("L2_overflow:")
    a(f"  s_mov_b32 s{sSTEP}, 1")
    a("  s_branch L2_rezero")

    a("L2_epilogue:")
    eP = vROW
    eA = vTP
    eB = vROW + 4
    a(f"  s_mul_i32 s{sT0}, s{sWAVE}, {5*AGG_STRIDE}\n  s_add_u32 s{sT0}, s{sT0}, {L_AGG}")
    a(f"  v_add_u32 v{vT0}, s{sT0}, v{vL16}")
    for s in range(5):
        b = vACC + 8 * s
        p = vROW + 4 * (s % 2)
        for i in range(4):
            a(f"  v_cvt_pk_bf16_f32 v{p+i}, v{b+2*i}, v{b+2*i+1}")
        a(f"  ds_write_b128 v{vT0}, v[{p}:{p+3}] offset:{s*AGG_STRIDE}")
        a("  s_nop 1")
    a(f"  v_lshrrev_b32 v{vT1}, 4, v{vLane}")
    a(f"  v_bfe_u32 v{vT2}, v{vLane}, 2, 2")
    a(f"  v_lshl_add_u32 v{vT2}, v{vT1}, 2, v{vT2}")
    a(f"  v_and_b32 v{vT3}, 3, v{vLane}")
    a(f"  v_lshlrev_b32 v{vRecA}, 3, v{vT2}\n  v_add_u32 v{vRecA}, s{sT0}, v{vRecA}")
    a(f"  v_mul_u32_u24 v{vEidxA}, {AGG_STRIDE}, v{vT3}\n  v_add_u32 v{vEidxA}, v{vEidxA}, v{vRecA}")
    a(f"  v_mul_u32_u24 v{vEIDX}, {WM_STRIDE}, v{vT2}\n  v_lshl_add_u32 v{vEIDX}, v{vT3}, 3, v{vEIDX}\n  v_add_u32 v{vEIDX}, {L_WMIX}, v{vEIDX}")
    a("  s_waitcnt lgkmcnt(0)")
    for tile in range(2):
        for s in range(4):
            for h in range(2):
                d = eA + tile * 16 + s * 4 + h * 2
                if tile == 0:
                    a(f"  ds_read_b64_tr_b16 v[{d}:{d+1}], v{vEidxA} offset:{(32*s+16*h)*8}")
                else:
                    a(f"  ds_read_b64_tr_b16 v[{d}:{d+1}], v{vRecA} offset:{4*AGG_STRIDE+(32*s+16*h)*8}")
    a(f"  s_mul_i32 s{sT0}, s2, {NPB}\n  s_mul_i32 s{sT1}, s{sWAVE}, 5\n  s_add_u32 s{sT0}, s{sT0}, s{sT1}\n  s_lshl_b32 s{sT0}, s{sT0}, 10")
    a(f"  s_add_u32 s{sT1}, s{sT0}, 4096")
    a(f"  v_and_b32 v{vT3}, 15, v{vLane}\n  v_lshlrev_b32 v{vT3}, 3, v{vT3}\n  v_lshl_add_u32 v{vT3}, v{vT1}, 10, v{vT3}")
    eBb = [vROW, vROW + 16]
    eD = vACC
    def bload(ct):
        for s in range(4):
            for h in range(2):
                d = eBb[ct % 2] + s * 4 + h * 2
                a(f"  ds_read_b64_tr_b16 v[{d}:{d+1}], v{vEIDX} offset:{(32*s+16*h)*WM_STRIDE + ct*32}")
    bload(0)
    for ct in range(8):
        if ct + 1 < 8:
            bload(ct + 1)
            a("  s_waitcnt lgkmcnt(8)")
        else:
            a("  s_waitcnt lgkmcnt(0)")
        for tile in range(2):
            d = eD + (ct % 2) * 8 + tile * 4
            for s in range(4):
                c = "0" if s == 0 else f"v[{d}:{d+3}]"
                A_ = eA + tile * 16 + s * 4
                B_ = eBb[ct % 2] + s * 4
                a(f"  v_mfma_f32_16x16x32_bf16 v[{d}:{d+3}], v[{A_}:{A_+3}], v[{B_}:{B_+3}], {c}")
        if ct > 0:
            store_ct(a, ct - 1, eD, vT, vT3, sOUT, sT0, sT1)
    a("  s_nop 7")
    store_ct(a, 7, eD, vT, vT3, sOUT, sT0, sT1)
    if stamps:
        stamp(5)
        a("  s_waitcnt lgkmcnt(0)")
        for i in range(6):
            a(f"  v_mov_b32 v{vT+0}, s{sST+2*i}\n  v_mov_b32 v{vT+1}, s{sST+2*i+1}")
            a(f"  s_lshl_b32 s{sT0}, s2, 3\n  s_add_u32 s{sT0}, s{sT0}, s{sWAVE}\n  s_mul_i32 s{sT0}, s{sT0}, 64\n  s_add_u32 s{sT0}, s{sT0}, {STAMP_OFF + 8*i}")
            a(f"  v_mov_b32 v{vT+2}, 0")
            a(f"  s_mov_b32 s{sOFFSRD}, s6\n  s_mov_b32 s{sOFFSRD+1}, s7\n  s_mov_b32 s{sOFFSRD+2}, 0x10000000\n  s_mov_b32 s{sOFFSRD+3}, 0x20000")
            a(f"  buffer_store_dwordx2 v[{vT}:{vT+1}], v{vT+2}, s[{sOFFSRD}:{sOFFSRD+3}], s{sT0} offen")
            a("  s_waitcnt vmcnt(0)")
    a("L2_end:")
    a("  s_endpgm")
    return NV, NS

STAMP_OFF = 0x4000000

def store_ct(a, ct, eD, vT, vOff, sOUT, sT0, sT1):
    for tile in range(2):
        d = eD + (ct % 2) * 8 + tile * 4
        p = vT + 2 * tile
        a(f"  v_cvt_pk_bf16_f32 v{p}, v{d}, v{d+1}")
        a(f"  v_cvt_pk_bf16_f32 v{p+1}, v{d+2}, v{d+3}")
    a(f"  buffer_store_dwordx2 v[{vT}:{vT+1}], v{vOff}, s[{sOUT}:{sOUT+3}], s{sT0} offen offset:{ct*128}")
    a("  s_mov_b64 exec, 0xffff")
    a(f"  buffer_store_dwordx2 v[{vT+2}:{vT+3}], v{vOff}, s[{sOUT}:{sOUT+3}], s{sT1} offen offset:{ct*128}")
    a("  s_mov_b64 exec, -1")

def build(opt):
    a = A()
    a(f"; @launch kernel={K1} grid=({NCH},1,1) block=({CH},1,1) lds=2048")
    a(f"; @launch kernel={K2} grid=({NB},1,1) block=(512,1,1) lds={LDS2}")
    a('.amdgcn_target "amdgcn-amd-amdhsa--gfx950"')
    a(".text")
    gen_k1(a)
    nv, ns = gen_k2(a, opt)
    a('.section .rodata,"a"\n.p2align 6')
    a(kd(K1, 40, 40))
    a(".p2align 6")
    a(kd(K2, nv, ns))
    return a.text()

if __name__ == "__main__":
    out = sys.argv[1] if len(sys.argv) > 1 else "gather_scatter__tensor_product_equiv_tfn__graph.s"
    opt = {}
    for x in sys.argv[2:]:
        k, _, val = x.partition("=")
        opt[k] = int(val) if val else True
    open(out, "w").write(build(opt))
    print("wrote", out, "LDS2 =", LDS2)
```

```python
import sys

N, E, C = 10000, 160000, 128
NB = 250
NPB = 40
NCH = 250
CH = 640
OFFS = 0
RECS = 0x40000
WS_USED = RECS + E * 16

K1 = "bin_edges_kernel"
K2 = "gather_scatter__tensor_product_equiv_tfn__graph_kernel"

class A:
    def __init__(self):
        self.L = []
    def __call__(self, s):
        for line in s.strip("\n").split("\n"):
            self.L.append(line)
    def text(self):
        return "\n".join(self.L) + "\n"

def srd(a, r, lo, size):
    a(f"  s_mov_b32 s{r}, s{lo}\n  s_mov_b32 s{r+1}, s{lo+1}\n  s_mov_b32 s{r+2}, {size}\n  s_mov_b32 s{r+3}, 0x20000")

def wave_scan(a, v):
    for ctl in ("row_shr:1", "row_shr:2", "row_shr:4", "row_shr:8"):
        a(f"  s_nop 1\n  v_add_u32_dpp v{v}, v{v}, v{v} {ctl} row_mask:0xf bank_mask:0xf bound_ctrl:0")
    a(f"  s_nop 1\n  v_add_u32_dpp v{v}, v{v}, v{v} row_bcast:15 row_mask:0xa bank_mask:0xf")
    a(f"  s_nop 1\n  v_add_u32_dpp v{v}, v{v}, v{v} row_bcast:31 row_mask:0xc bank_mask:0xf")

def kd(name, nv, ns, extra=""):
    acc = min((nv + 3) // 4 * 4, 256)
    return f""".amdhsa_kernel {name}
  .amdhsa_next_free_vgpr {nv}
  .amdhsa_next_free_sgpr {ns}
  .amdhsa_accum_offset {acc}
  .amdhsa_group_segment_fixed_size 0
  .amdhsa_kernarg_size 88
  .amdhsa_user_sgpr_count 2
  .amdhsa_user_sgpr_kernarg_segment_ptr 1
  .amdhsa_system_sgpr_workgroup_id_x 1
  .amdhsa_float_denorm_mode_32 3
{extra}.end_amdhsa_kernel"""

def hwslot(a, dst, tmp):
    a(f"  s_getreg_b32 s{dst}, hwreg(HW_REG_HW_ID, 13, 2)")
    a(f"  s_getreg_b32 s{tmp}, hwreg(HW_REG_HW_ID, 8, 4)")
    a(f"  s_mul_i32 s{dst}, s{dst}, 9")
    a(f"  s_add_u32 s{dst}, s{dst}, s{tmp}")

def gen_k1(a, opt):
    P1 = opt.get("p1", 0)
    stamps = opt.get("stamps", False)
    def stamp(i):
        if stamps: a(f"  s_memrealtime s[{48+2*i}:{48+2*i+1}]")
    a(f".globl {K1}\n.p2align 8\n.type {K1},@function\n{K1}:")
    a(f"  s_cmp_ge_u32 s2, {NCH}\n  s_cbranch_scc1 L1_end")
    stamp(0)
    a("  s_load_dwordx2 s[32:33], s[0:1], 0")
    a("  s_load_dwordx4 s[4:7], s[0:1], 8")
    a("  s_load_dwordx2 s[8:9], s[0:1], 24")
    a("  s_load_dwordx2 s[10:11], s[0:1], 80")
    a("  v_lshlrev_b32 v1, 2, v0")
    a("  v_mov_b32 v2, 0")
    a("  v_lshrrev_b32 v21, 6, v0")
    a("  v_cmp_gt_u32 vcc, 256, v0")
    a("  s_and_saveexec_b64 s[12:13], vcc")
    a("  ds_write_b32 v1, v2")
    a("  s_mov_b64 exec, s[12:13]")
    a(f"  s_mul_i32 s14, s2, {CH}")
    a("  v_add_u32 v3, s14, v0")
    a("  v_readfirstlane_b32 s15, v21")
    a("  v_lshlrev_b32 v4, 2, v3")
    a("  v_lshlrev_b32 v5, 3, v3")
    a("  s_waitcnt lgkmcnt(0)")
    srd(a, 16, 4, E * 4)
    srd(a, 20, 6, E * 4)
    srd(a, 24, 8, E * 8)
    srd(a, 28, 10, WS_USED)
    a("  buffer_load_dword v6, v4, s[20:23], 0 offen")
    a("  buffer_load_dword v7, v4, s[16:19], 0 offen")
    a("  buffer_load_dwordx2 v[10:11], v5, s[24:27], 0 offen")
    if P1:
        srd(a, 36, 32, N * 1024)
        hwslot(a, 34, 35)
        a("  s_mul_i32 s34, s34, 10\n  s_add_u32 s34, s34, s15\n  s_lshl_b32 s34, s34, 10")
        a(f"  s_add_u32 s34, s34, {360*1024*(P1-1)}")
        a("  v_and_b32 v22, 63, v0\n  v_lshlrev_b32 v22, 4, v22")
        for k in range(P1):
            a("  buffer_load_dwordx4 v[40:43], v22, s[36:39], s34 offen")
            if k + 1 < P1: a(f"  s_sub_u32 s34, s34, {360*1024}")
    a("  s_barrier")
    a(f"  s_waitcnt vmcnt({2+P1})")
    stamp(1)
    a("  v_mul_u32_u24 v12, 52429, v6")
    a("  v_lshrrev_b32 v12, 21, v12")
    a("  v_min_u32 v12, 255, v12")
    a("  v_and_b32 v16, 7, v12\n  v_lshlrev_b32 v16, 7, v16")
    a("  v_lshrrev_b32 v17, 3, v12\n  v_lshl_add_u32 v16, v17, 2, v16")
    a("  v_mov_b32 v17, 1")
    a("  ds_add_rtn_u32 v18, v16, v17")
    a("  v_mul_u32_u24 v13, 40, v12")
    a("  v_sub_u32 v13, v6, v13")
    a("  v_mul_u32_u24 v14, 52, v13")
    a("  v_lshrrev_b32 v14, 8, v14")
    a("  v_mul_u32_u24 v15, 5, v14")
    a("  v_sub_u32 v15, v13, v15")
    a("  v_lshlrev_b32 v14, 7, v14")
    a("  v_lshl_or_b32 v14, v15, 3, v14")
    a("  v_lshlrev_b32 v9, 5, v3")
    a(f"  s_waitcnt vmcnt({1+P1})")
    a("  v_lshl_or_b32 v8, v7, 10, v14")
    a("  s_waitcnt lgkmcnt(0)")
    a("  s_barrier")
    stamp(2)
    a("  s_cmp_lg_u32 s15, 0\n  s_cbranch_scc1 L1_noscan")
    a("  v_lshlrev_b32 v19, 4, v0")
    a("  ds_read_b128 v[24:27], v19")
    a("  s_waitcnt lgkmcnt(0)")
    a("  v_add_u32 v28, v24, v25")
    a("  v_add_u32 v29, v28, v26")
    a("  v_add_u32 v30, v29, v27")
    a("  v_mov_b32 v31, v30")
    wave_scan(a, 31)
    a("  v_sub_u32 v32, v31, v30")
    a("  v_add_u32 v33, v32, v24")
    a("  v_add_u32 v34, v32, v28")
    a("  v_add_u32 v35, v32, v29")
    a("  ds_write_b128 v19, v[32:35] offset:1024")
    a("  v_lshl_or_b32 v36, v24, 16, v32")
    a("  v_lshl_or_b32 v37, v25, 16, v33")
    a("  v_lshl_or_b32 v38, v26, 16, v34")
    a("  v_lshl_or_b32 v39, v27, 16, v35")
    a("  s_lshl_b32 s12, s2, 10")
    a(f"  buffer_store_dwordx4 v[36:39], v19, s[28:31], s12 offen offset:{OFFS}")
    a("  s_waitcnt lgkmcnt(0)")
    a("L1_noscan:")
    a("  s_barrier")
    stamp(3)
    a("  ds_read_b32 v19, v16 offset:1024")
    a("  s_waitcnt lgkmcnt(0)")
    a("  v_add3_u32 v19, v19, v18, s14")
    a("  v_lshlrev_b32 v19, 4, v19")
    a(f"  s_mov_b32 s12, {RECS}")
    a("  s_cmp_lg_u32 s15, 0\n  s_cbranch_scc1 L1_w1")
    a(f"  s_waitcnt vmcnt({P1+1})\n  s_branch L1_w2")
    a("L1_w1:")
    a(f"  s_waitcnt vmcnt({P1})")
    a("L1_w2:")
    a("  buffer_store_dwordx4 v[8:11], v19, s[28:31], s12 offen")
    if stamps:
        stamp(4)
        a("  s_waitcnt vmcnt(0)")
        stamp(5)
        a("  s_waitcnt lgkmcnt(0)")
        a(f"  s_mov_b32 s44, s10\n  s_mov_b32 s45, s11\n  s_mov_b32 s46, 0x10000000\n  s_mov_b32 s47, 0x20000")
        a(f"  s_mul_i32 s12, s2, 10\n  s_add_u32 s12, s12, s15\n  s_mul_i32 s12, s12, 64\n  s_add_u32 s12, s12, {STAMP1_OFF}")
        a("  v_mov_b32 v2, 0")
        for i in range(6):
            a(f"  v_mov_b32 v20, s{48+2*i}\n  v_mov_b32 v21, s{48+2*i+1}")
            a(f"  buffer_store_dwordx2 v[20:21], v2, s[44:47], s12 offen offset:{8*i}")
            a("  s_waitcnt vmcnt(0)")
    a("L1_end:")
    a("  s_endpgm")

L_CNT = 0
L_FLAG = 2048
CAPFILL = 256
CAPW = CAPFILL + 32
L_LIST = 4096
L_WMIX = L_LIST + 8 * CAPW * 16
L_AGG = L_WMIX + 128 * 256
AGG_STRIDE = 1088
LDS2 = L_AGG + 8 * 5 * AGG_STRIDE
DUMMY_W0 = 0x7FFFFC00 | 40
DUMMY_W1 = 0x7FFFFFE0

class V:
    def __init__(self, start=1):
        self.n = start
    def get(self, cnt=1, align=1):
        self.n = (self.n + align - 1) // align * align
        r = self.n
        self.n += cnt
        return r

def gen_k2(a, opt):
    stamps = opt.get("stamps", False)
    NR = 8
    v = V(1)
    vLane = v.get(); vL16 = v.get(); vT0 = v.get(); vT1 = v.get(); vT2 = v.get(); vT3 = v.get()
    vOL = v.get(); vLen = v.get(); vRecOff = v.get(); vJ = v.get()
    vRecA = v.get(); vEidxA = v.get()
    vEIDX = v.get(); vQ8 = v.get(); vW0 = v.get(); vRem = v.get()
    vREC = v.get(4, 4)
    vKP = v.get(2, 2); vKPn = v.get(2, 2); vEF = v.get(2, 2); vEFn = v.get(2, 2)
    vCG = v.get(8, 2)
    vWB = v.get(16, 2)
    vZ = v.get(8, 2); vRR = v.get(8, 2); vT = v.get(8, 2)
    vACC = v.get(48, 4)
    vROW = v.get(32, 4)
    vTP = v.get(32, 4)
    pREC = vROW
    pKEY = vTP
    pRANK = vTP + 8
    pW = vTP + 16
    pM = vACC
    pC = vACC + 16
    sX = 8; sWS = 12; sEF = 16; sOUT = 20; sTMP = 24
    sWAVE = 28; sN = 29; sG = 30; sKB = 31; sSTEP = 32; sMAXL = 33; sLISTW = 34; sT0 = 35; sT1 = 36; sFLAG = 37
    sNLOG = 38
    sM = 40
    sW = 56
    sO = 72
    sSAVE = 76
    sP1 = 78; sP2 = 79
    sOFFSRD = 80
    sPF = 3
    sST = 88
    NS = 100
    def stamp(i):
        if stamps:
            if opt.get("clk") and i in (1, 2): return
            a(f"  s_memrealtime s[{sST+2*i}:{sST+2*i+1}]")
            if opt.get("clk") and i in (3, 4): a(f"  s_memtime s[{sST+2*(i-2)}:{sST+2*(i-2)+1}]")

    P2 = opt.get("p2", 0); R1 = 360 * opt.get("p1", 0)
    vPF = v.get(4, 4); vD0 = v.get(); vD1 = v.get()
    NV = v.n
    a(f".globl {K2}\n.p2align 8\n.type {K2},@function\n{K2}:")
    a(f"  s_cmp_ge_u32 s2, {NB}\n  s_cbranch_scc1 L2_end")
    stamp(0)
    a("  s_load_dwordx2 s[6:7], s[0:1], 80")
    a("  s_load_dwordx2 s[4:5], s[0:1], 0")
    a("  s_load_dwordx4 s[84:87], s[0:1], 32")
    a("  s_load_dwordx4 s[40:43], s[0:1], 48")
    a("  s_load_dwordx2 s[44:45], s[0:1], 64")
    a(f"  v_and_b32 v{vLane}, 63, v0")
    a(f"  v_lshrrev_b32 v{vT0}, 6, v0")
    a(f"  v_lshlrev_b32 v{vL16}, 4, v{vLane}")
    a(f"  v_readfirstlane_b32 s{sWAVE}, v{vT0}")
    a(f"  v_lshlrev_b32 v{vT1}, 2, v0")
    a(f"  v_mov_b32 v{vT2}, 0")
    a(f"  ds_write_b32 v{vT1}, v{vT2} offset:{L_CNT}")
    a(f"  v_cmp_gt_u32 vcc, 16, v0\n  s_and_saveexec_b64 s[{sSAVE}:{sSAVE+1}], vcc")
    a(f"  ds_write_b32 v{vT1}, v{vT2} offset:{L_FLAG}")
    a(f"  s_mov_b64 exec, s[{sSAVE}:{sSAVE+1}]")
    a(f"  v_lshrrev_b32 v{vT0}, 1, v0")
    a(f"  v_and_b32 v{vJ}, 1, v0")
    a(f"  s_and_b32 s{sT0}, s2, 7\n  s_lshl_b32 s{sT0}, s{sT0}, 5\n  s_lshr_b32 s{sT1}, s2, 3\n  s_add_u32 s{sT0}, s{sT0}, s{sT1}")
    a(f"  s_lshl_b32 s{sT0}, s{sT0}, 2")
    a(f"  v_lshlrev_b32 v{vT3}, 10, v{vT0}")
    a(f"  v_mul_u32_u24 v{vRecOff}, {CH}, v{vT0}")
    a(f"  v_lshrrev_b32 v{vT0}, 4, v{vLane}")
    a(f"  v_and_b32 v{vT1}, 15, v{vLane}")
    a(f"  v_lshlrev_b32 v{vT2}, 1, v{vT0}")
    a(f"  v_xor_b32 v{vD0}, v{vT1}, v{vT2}")
    a(f"  v_xor_b32 v{vD1}, 8, v{vD0}")
    a(f"  v_lshlrev_b32 v{vT0}, 8, v{vT0}")
    a(f"  v_lshl_add_u32 v{vD0}, v{vD0}, 4, v{vT0}")
    a(f"  v_lshl_add_u32 v{vD1}, v{vD1}, 4, v{vT0}")
    a("  s_waitcnt lgkmcnt(0)")
    srd(a, sOFFSRD, 6, NCH * 1024)
    a(f"  buffer_load_dword v{vOL}, v{vT3}, s[{sOFFSRD}:{sOFFSRD+3}], s{sT0} offen")
    srd(a, sX, 4, N * 1024)
    srd(a, sWS, 6, WS_USED)
    srd(a, sEF, 84, E * 32)
    srd(a, sOUT, 44, N * 1024)
    srd(a, sTMP, 86, 16 * C * 2)
    a(f"  v_lshlrev_b32 v{vT1}, 2, v{vLane}")
    for k in range(16):
        a(f"  buffer_load_dword v{pW+k}, v{vT1}, s[{sTMP}:{sTMP+3}], 0 offen offset:{k*256}")
    srd(a, sOFFSRD, 40, 128)
    a(f"  v_and_b32 v{vT2}, 3, v{vLane}\n  v_lshlrev_b32 v{vT2}, 1, v{vT2}")
    for i in range(4):
        for f in range(4):
            a(f"  buffer_load_ushort v{pC+4*i+f}, v{vT2}, s[{sOFFSRD}:{sOFFSRD+3}], 0 offen offset:{(i*16+f*4)*2}")
    srd(a, sTMP, 42, C * C * 2)
    a(f"  s_lshl_b32 s{sT1}, s{sWAVE}, 12")
    for i in range(4):
        a(f"  s_add_u32 m0, s{sT1}, {L_WMIX}")
        a("  s_nop 0")
        a(f"  buffer_load_dwordx4 v{vD0 if i % 2 == 0 else vD1}, s[{sTMP}:{sTMP+3}], s{sT1} offen lds")
        if i < 3: a(f"  s_add_u32 s{sT1}, s{sT1}, 1024")
    NAUX = 4 + 16 + 16
    a("  s_barrier")
    a(f"  s_mul_i32 s{sLISTW}, s{sWAVE}, {CAPW*16}\n  s_add_u32 s{sLISTW}, s{sLISTW}, {L_LIST}")
    a(f"  s_mov_b32 s{sNLOG}, 0xbfb8aa3b\n  s_mov_b32 s{sNLOG+1}, 0xbfb8aa3b")
    a(f"  s_mov_b32 s{sP1}, 0x05040100\n  s_mov_b32 s{sP2}, 0x07060302")
    a(f"  v_lshrrev_b32 v{vT1}, 2, v{vLane}\n  v_and_b32 v{vT1}, 3, v{vT1}\n  v_lshlrev_b32 v{vQ8}, 3, v{vT1}")
    a(f"  s_mov_b32 s{sKB}, 0\n  s_mov_b32 s{sSTEP}, {2*NR}")
    if P2:
        hwslot(a, sPF, sT1)
        a(f"  s_lshl_b32 s{sPF}, s{sPF}, 3\n  s_add_u32 s{sPF}, s{sPF}, s{sWAVE}\n  s_add_u32 s{sPF}, s{sPF}, {R1 + 288*(P2-1)}\n  s_lshl_b32 s{sPF}, s{sPF}, 10")
    a(f"  s_waitcnt vmcnt({NAUX})")
    stamp(1)
    a(f"  v_lshrrev_b32 v{vLen}, 16, v{vOL}")
    a(f"  v_and_b32 v{vOL}, 0xffff, v{vOL}")
    a(f"  v_add3_u32 v{vRecOff}, v{vRecOff}, v{vOL}, v{vJ}")
    a(f"  v_lshlrev_b32 v{vRecOff}, 4, v{vRecOff}")

    def rec_masks():
        a(f"  s_add_u32 s{sT0}, s{sKB}, s{sSTEP}")
        a(f"  v_min_u32 v{vRem}, s{sT0}, v{vLen}")
        a(f"  v_subrev_u32 v{vRem}, s{sKB}, v{vRem}")
        a(f"  v_sub_u32 v{vRem}, v{vRem}, v{vJ}")
        a(f"  s_lshl_b32 s{sT0}, s{sKB}, 4\n  s_add_u32 s{sT0}, s{sT0}, {RECS}")
        for r in range(NR):
            a(f"  v_cmp_lt_i32 s[{sM+2*r}:{sM+2*r+1}], {2*r}, v{vRem}")
        a("  s_nop 3")
    def rec_load(r):
        a(f"  s_mov_b64 exec, s[{sM+2*r}:{sM+2*r+1}]")
        a(f"  buffer_load_dwordx4 v[{pREC+4*r}:{pREC+4*r+3}], v{vRecOff}, s[{sWS}:{sWS+3}], s{sT0} offen offset:{32*r}")
    def prefetch_block():
        for k in range(P2):
            a(f"  buffer_load_dwordx4 v[{vPF}:{vPF+3}], v{vL16}, s[{sX}:{sX+3}], s{sPF} offen")
            if k + 1 < P2: a(f"  s_sub_u32 s{sPF}, s{sPF}, {288*1024}")

    rec_masks()
    for r in range(NR):
        a(f"  s_cmp_eq_u64 s[{sM+2*r}:{sM+2*r+1}], 0\n  s_cbranch_scc1 L2_first_{r}")
        rec_load(r)
    for r in range(NR, -1, -1):
        a(f"L2_first_{r}:")
        a("  s_mov_b64 exec, -1")
        prefetch_block()
        a(f"  s_waitcnt vmcnt({r + P2})")
        if r > 0: a("  s_branch L2_stage")
    a("L2_stage:")
    a(f"  v_cmp_lt_u32 vcc, {2*NR}, v{vLen}\n  s_and_saveexec_b64 s[{sSAVE}:{sSAVE+1}], vcc")
    a(f"  s_cbranch_execz L2_nomax")
    a(f"  v_mov_b32 v{vT1}, {L_FLAG+4}")
    a(f"  ds_max_u32 v{vT1}, v{vLen}")
    a(f"L2_nomax:")
    a(f"  s_mov_b64 exec, s[{sSAVE}:{sSAVE+1}]")
    for q in range(4):
        for t in range(2):
            sel = sP1 if t == 0 else sP2
            b = vWB + (q * 2 + t) * 2
            a(f"  v_perm_b32 v{b}, v{pW+4*q+1}, v{pW+4*q}, s{sel}")
            a(f"  v_perm_b32 v{b+1}, v{pW+4*q+3}, v{pW+4*q+2}, s{sel}")
    for i in range(4):
        a(f"  v_lshl_or_b32 v{vCG+2*i}, v{pC+4*i+1}, 16, v{pC+4*i}")
        a(f"  v_lshl_or_b32 v{vCG+2*i+1}, v{pC+4*i+3}, 16, v{pC+4*i+2}")
    for r in range(48):
        a(f"  v_mov_b32 v{vACC+r}, 0")
    a(f"  s_waitcnt vmcnt({P2})")
    stamp(2)
    a("  s_branch L2_pass_keys")

    a("L2_pass:")
    rec_masks()
    for r in range(NR):
        a(f"  s_cmp_eq_u64 s[{sM+2*r}:{sM+2*r+1}], 0\n  s_cbranch_scc1 L2_ld_done")
        rec_load(r)
    a("L2_ld_done:")
    a("  s_mov_b64 exec, -1")
    a("  s_waitcnt vmcnt(0)")
    a("L2_pass_keys:")
    a(f"  v_mov_b32 v{vT3}, 1")
    for r in range(NR):
        a(f"  s_cmp_eq_u64 s[{sM+2*r}:{sM+2*r+1}], 0\n  s_cbranch_scc1 L2_key_done")
        a(f"  s_mov_b64 exec, s[{sM+2*r}:{sM+2*r+1}]")
        w0 = pREC + 4 * r
        a(f"  v_bfe_u32 v{vT0}, v{w0}, 7, 3")
        a(f"  v_lshrrev_b32 v{vT1}, 18, v{w0}")
        a(f"  v_lshlrev_b32 v{vT1}, 2, v{vT1}")
        a(f"  v_lshl_add_u32 v{pKEY+r}, v{vT0}, 8, v{vT1}")
        a(f"  ds_add_rtn_u32 v{pRANK+r}, v{pKEY+r}, v{vT3} offset:{L_CNT}")
    a("L2_key_done:")
    a("  s_mov_b64 exec, -1")
    a("  s_waitcnt lgkmcnt(0)")
    a("  s_barrier")
    a(f"  s_lshl_b32 s{sT0}, s{sWAVE}, 8")
    a(f"  v_lshl_add_u32 v{vT0}, v{vLane}, 2, s{sT0}")
    a(f"  ds_read_b32 v{vT1}, v{vT0} offset:{L_CNT}")
    a("  s_waitcnt lgkmcnt(0)")
    a(f"  v_mov_b32 v{vT2}, v{vT1}")
    wave_scan(a, vT2)
    a(f"  v_sub_u32 v{vT1}, v{vT2}, v{vT1}")
    a(f"  v_readlane_b32 s{sN}, v{vT2}, 63")
    a(f"  ds_write_b32 v{vT0}, v{vT1} offset:{L_CNT}")
    a(f"  s_cmp_gt_u32 s{sN}, {CAPFILL}\n  s_cbranch_scc0 L2_noovf")
    a(f"  v_mov_b32 v{vT0}, {L_FLAG}\n  v_mov_b32 v{vT1}, 1\n  ds_write_b32 v{vT0}, v{vT1}")
    a("  s_branch L2_padded")
    a("L2_noovf:")
    a(f"  s_lshl_b32 s{sT0}, s{sN}, 4\n  s_add_u32 s{sT0}, s{sT0}, s{sLISTW}")
    a(f"  v_add_u32 v{vT0}, s{sT0}, v{vL16}")
    a(f"  v_mov_b32 v{vREC}, {DUMMY_W0}\n  v_mov_b32 v{vREC+1}, {DUMMY_W1}\n  v_mov_b32 v{vREC+2}, 0\n  v_mov_b32 v{vREC+3}, 0")
    a(f"  s_mov_b32 exec_hi, 0")
    a(f"  ds_write_b128 v{vT0}, v[{vREC}:{vREC+3}]")
    a(f"  s_mov_b64 exec, -1")
    a("L2_padded:")
    a("  s_waitcnt lgkmcnt(0)")
    a("  s_barrier")
    a(f"  v_mov_b32 v{vT0}, {L_FLAG}")
    a(f"  ds_read_b64 v[{vKPn}:{vKPn+1}], v{vT0}")
    for r in range(NR):
        a(f"  s_cmp_eq_u64 s[{sM+2*r}:{sM+2*r+1}], 0\n  s_cbranch_scc1 L2_base_done")
        a(f"  s_mov_b64 exec, s[{sM+2*r}:{sM+2*r+1}]")
        a(f"  ds_read_b32 v{pW+r}, v{pKEY+r} offset:{L_CNT}")
    a("L2_base_done:")
    a("  s_mov_b64 exec, -1")
    a("  s_waitcnt lgkmcnt(0)")
    a(f"  v_readfirstlane_b32 s{sFLAG}, v{vKPn}")
    a(f"  v_readfirstlane_b32 s{sMAXL}, v{vKPn+1}")
    a(f"  s_cmp_lg_u32 s{sFLAG}, 0\n  s_cbranch_scc1 L2_overflow")
    for r in range(NR):
        a(f"  s_cmp_eq_u64 s[{sM+2*r}:{sM+2*r+1}], 0\n  s_cbranch_scc1 L2_scat_done")
        a(f"  s_mov_b64 exec, s[{sM+2*r}:{sM+2*r+1}]")
        w0 = pREC + 4 * r
        a(f"  v_lshrrev_b32 v{vT0}, 8, v{pKEY+r}")
        a(f"  v_mul_u32_u24 v{vT0}, {CAPW*16}, v{vT0}")
        a(f"  v_add_u32 v{vT1}, v{pW+r}, v{pRANK+r}")
        a(f"  v_lshl_add_u32 v{vT0}, v{vT1}, 4, v{vT0}")
        a(f"  v_and_b32 v{w0}, 0xfffffc7f, v{w0}")
        a(f"  ds_write_b128 v{vT0}, v[{w0}:{w0+3}] offset:{L_LIST}")
    a("L2_scat_done:")
    a("  s_mov_b64 exec, -1")
    a("  s_waitcnt lgkmcnt(0)")
    a("  s_barrier")
    stamp(3)

    def kcompute(dst):
        for i in range(4):
            a(f"  v_dot2_f32_bf16 v{vT+i}, v{vREC+3}, v{vCG+2*i+1}, 0")
        for i in range(4):
            a(f"  v_dot2_f32_bf16 v{vT+i}, v{vREC+2}, v{vCG+2*i}, v{vT+i}")
        a("  s_nop 2")
        a(f"  v_cvt_pk_bf16_f32 v{dst}, v{vT}, v{vT+1}")
        a(f"  v_cvt_pk_bf16_f32 v{dst+1}, v{vT+2}, v{vT+3}")
    def rmfma(ef, grp, q, t):
        c = "0" if q == 0 else f"v[{vZ+4*t}:{vZ+4*t+3}]"
        b = vWB + (q * 2 + t) * 2
        a(f"  v_mfma_f32_4x4x4_16b_bf16 v[{vZ+4*t}:{vZ+4*t+3}], v[{ef}:{ef+1}], v[{b}:{b+1}], {c} cbsz:4 abid:{4*grp+q}")
    def rowload(slot, so):
        a(f"  buffer_load_dwordx4 v[{vROW+4*slot}:{vROW+4*slot+3}], v{vL16}, s[{sX}:{sX+3}], s{so} offen")

    a(f"  s_cmp_eq_u32 s{sN}, 0\n  s_cbranch_scc1 L2_loop_exit")
    a(f"  s_add_u32 s{sG}, s{sN}, 3\n  s_lshr_b32 s{sG}, s{sG}, 2")
    a(f"  v_lshrrev_b32 v{vT0}, 2, v{vLane}\n  v_lshlrev_b32 v{vT0}, 4, v{vT0}\n  v_add_u32 v{vRecA}, s{sLISTW}, v{vT0}")
    a(f"  v_lshrrev_b32 v{vT0}, 4, v{vLane}\n  v_lshlrev_b32 v{vT0}, 2, v{vT0}\n  v_and_b32 v{vT1}, 3, v{vLane}")
    a(f"  v_add_u32 v{vT0}, v{vT0}, v{vT1}\n  v_lshlrev_b32 v{vT0}, 4, v{vT0}\n  v_add_u32 v{vEidxA}, s{sLISTW}, v{vT0}")
    a(f"  ds_read_b128 v[{vREC}:{vREC+3}], v{vRecA}")
    a(f"  ds_read_b32 v{vEIDX}, v{vEidxA} offset:4")
    a("  s_waitcnt lgkmcnt(0)")
    a(f"  v_add_u32 v{vT0}, v{vEIDX}, v{vQ8}")
    a(f"  buffer_load_dwordx2 v[{vEF}:{vEF+1}], v{vT0}, s[{sEF}:{sEF+3}], 0 offen")
    a(f"  ds_read_b32 v{vEIDX}, v{vEidxA} offset:{256+4}")
    for j in range(8):
        a(f"  v_readlane_b32 s{sW+j}, v{vREC}, {4*j}")
        a(f"  s_andn2_b32 s{sO}, s{sW+j}, 63")
        rowload(j, sO)
    a(f"  v_mov_b32 v{vW0}, v{vREC}")
    kcompute(vKP)
    a(f"  v_add_u32 v{vRecA}, 256, v{vRecA}")
    a(f"  v_add_u32 v{vEidxA}, 512, v{vEidxA}")
    a("  s_waitcnt vmcnt(8)")
    for q in range(4):
        rmfma(vEF, 0, q, 0); rmfma(vEF, 0, q, 1)
        a("  s_nop 1")
    a("  s_nop 4")
    a("L2_batch:")
    for gi in range(4):
        if gi == 0:
            a("  s_waitcnt lgkmcnt(0)")
            a(f"  ds_read_b128 v[{vREC}:{vREC+3}], v{vRecA}")
        if gi == 1:
            a("  s_waitcnt lgkmcnt(0)")
        if opt.get("ab_nosilu"):
            pass
        elif opt.get("silu_nopk"):
            for i in range(8): a(f"  v_mul_f32 v{vT+i}, s{sNLOG}, v{vZ+i}")
            for i in range(8): a(f"  v_exp_f32 v{vT+i}, v{vT+i}")
            for i in range(8): a(f"  v_add_f32 v{vT+i}, 1.0, v{vT+i}")
            for i in range(8): a(f"  v_rcp_f32 v{vT+i}, v{vT+i}")
            for i in range(8): a(f"  v_mul_f32 v{vRR+i}, v{vZ+i}, v{vT+i}")
        else:
            for p in range(4):
                a(f"  v_pk_mul_f32 v[{vT+2*p}:{vT+2*p+1}], v[{vZ+2*p}:{vZ+2*p+1}], s[{sNLOG}:{sNLOG+1}]")
            for i in range(8):
                a(f"  v_exp_f32 v{vT+i}, v{vT+i}")
            for p in range(4):
                a(f"  v_pk_add_f32 v[{vT+2*p}:{vT+2*p+1}], v[{vT+2*p}:{vT+2*p+1}], 1.0 op_sel_hi:[1,0]")
            for i in range(8):
                a(f"  v_rcp_f32 v{vT+i}, v{vT+i}")
            for p in range(4):
                a(f"  v_pk_mul_f32 v[{vRR+2*p}:{vRR+2*p+1}], v[{vZ+2*p}:{vZ+2*p+1}], v[{vT+2*p}:{vT+2*p+1}]")
        if gi == 1:
            kcompute(vKPn)
            a(f"  ds_read_b32 v{vEIDX}, v{vEidxA} offset:4")
            a(f"  v_add_u32 v{vEidxA}, 256, v{vEidxA}")
        nset = (gi + 2) % 4
        ef, grp = (vEF, gi + 1) if gi < 3 else (vEFn, 0)
        if gi == 3:
            a("  s_waitcnt vmcnt(4)")
        for q in range(4):
            if not opt.get("ab_noR"):
                rmfma(ef, grp, q, 0); rmfma(ef, grp, q, 1)
            src, ln = (vW0, 4 * (4 * (gi + 2) + q)) if gi < 2 else (vREC, 4 * (4 * (gi - 2) + q))
            a(f"  v_readlane_b32 s{sW+4*nset+q}, v{src}, {ln}")
        if gi != 3:
            a(f"  s_waitcnt vmcnt({4 if gi == 0 else 5})")
        for r in range(4):
            sl = (gi % 2) * 4 + r
            for t in range(2):
                if opt.get("ab_notp"): continue
                a(f"  v_mfma_f32_4x4x4_16b_bf16 v[{vTP+8*r+4*t}:{vTP+8*r+4*t+3}], v[{vKP}:{vKP+1}], v[{vROW+4*sl+2*t}:{vROW+4*sl+2*t+1}], 0 cbsz:4 abid:{4*gi+r}")
        for r in range(4):
            if opt.get("nomem"): a(f"  s_and_b32 s{sO+r}, s{sW+4*nset+r}, 0x3c00")
            else: a(f"  s_andn2_b32 s{sO+r}, s{sW+4*nset+r}, 63")
        for r in range(4):
            if not opt.get("ab_noload"): rowload((gi % 2) * 4 + r, sO + r)
        if gi == 0:
            a(f"  v_add_u32 v{vT0}, v{vEIDX}, v{vQ8}")
            if opt.get("noef"): a(f"  v_and_b32 v{vT0}, 0x3ff, v{vT0}")
            a(f"  buffer_load_dwordx2 v[{vEFn}:{vEFn+1}], v{vT0}, s[{sEF}:{sEF+3}], 0 offen")
        for r in range(4):
            if opt.get("ab_noacc"): continue
            if not opt.get("ab_noidx"): a(f"  s_set_gpr_idx_on s{sW+4*gi+r}, gpr_idx(SRC2,DST)")
            for t in range(2):
                rr = vRR + 4 * t + (r & ~1)
                sel = "op_sel:[0,1,0] op_sel_hi:[1,1,1]" if r & 1 else "op_sel:[0,0,0] op_sel_hi:[1,0,1]"
                for h in range(2):
                    d = vACC + 4 * t + 2 * h
                    tp = vTP + 8 * r + 4 * t + 2 * h
                    if opt.get("acc_nopk"):
                        a(f"  v_fma_f32 v{d}, v{tp}, v{vRR+4*t+r}, v{d}")
                        a(f"  v_fma_f32 v{d+1}, v{tp+1}, v{vRR+4*t+r}, v{d+1}")
                    else:
                        a(f"  v_pk_fma_f32 v[{d}:{d+1}], v[{tp}:{tp+1}], v[{rr}:{rr+1}], v[{d}:{d+1}] {sel}")
            if not opt.get("ab_noidx"): a("  s_set_gpr_idx_off")
        if gi == 3:
            a(f"  v_mov_b32 v{vKP}, v{vKPn}\n  v_mov_b32 v{vKP+1}, v{vKPn+1}")
            a(f"  v_mov_b32 v{vEF}, v{vEFn}\n  v_mov_b32 v{vEF+1}, v{vEFn+1}")
            a(f"  v_mov_b32 v{vW0}, v{vREC}")
            a(f"  v_add_u32 v{vRecA}, 256, v{vRecA}")
        a(f"  s_sub_u32 s{sG}, s{sG}, 1")
        a(f"  s_cmp_eq_u32 s{sG}, 0")
        if gi < 3:
            a("  s_cbranch_scc1 L2_loop_exit")
        else:
            a("  s_cbranch_scc0 L2_batch")
    a("L2_loop_exit:")
    a("  s_waitcnt vmcnt(0) lgkmcnt(0)")
    stamp(4)
    a(f"  s_add_u32 s{sKB}, s{sKB}, s{sSTEP}")
    a(f"  s_cmp_lt_u32 s{sKB}, s{sMAXL}")
    a("  s_cbranch_scc0 L2_epilogue")
    a("L2_rezero:")
    a("  s_barrier")
    a(f"  v_lshlrev_b32 v{vT1}, 2, v0\n  v_mov_b32 v{vT2}, 0")
    a(f"  ds_write_b32 v{vT1}, v{vT2} offset:{L_CNT}")
    a(f"  v_mov_b32 v{vT1}, {L_FLAG}\n  ds_write_b32 v{vT1}, v{vT2}")
    a("  s_waitcnt lgkmcnt(0)")
    a("  s_barrier")
    a("  s_branch L2_pass")
    a("L2_overflow:")
    a(f"  s_mov_b32 s{sSTEP}, 1")
    a("  s_branch L2_rezero")

    a("L2_epilogue:")
    eP = vROW
    eA = vTP
    eB = vROW + 4
    a(f"  s_mul_i32 s{sT0}, s{sWAVE}, {5*AGG_STRIDE}\n  s_add_u32 s{sT0}, s{sT0}, {L_AGG}")
    a(f"  v_add_u32 v{vT0}, s{sT0}, v{vL16}")
    for s in range(5):
        b = vACC + 8 * s
        p = vROW + 4 * (s % 2)
        for i in range(4):
            a(f"  v_cvt_pk_bf16_f32 v{p+i}, v{b+2*i}, v{b+2*i+1}")
        a(f"  ds_write_b128 v{vT0}, v[{p}:{p+3}] offset:{s*AGG_STRIDE}")
        a("  s_nop 1")
    a(f"  v_lshrrev_b32 v{vT1}, 4, v{vLane}")
    a(f"  v_bfe_u32 v{vT2}, v{vLane}, 2, 2")
    a(f"  v_lshl_add_u32 v{vT2}, v{vT1}, 2, v{vT2}")
    a(f"  v_and_b32 v{vT3}, 3, v{vLane}")
    a(f"  v_lshlrev_b32 v{vRecA}, 3, v{vT2}\n  v_add_u32 v{vRecA}, s{sT0}, v{vRecA}")
    a(f"  v_mul_u32_u24 v{vEidxA}, {AGG_STRIDE}, v{vT3}\n  v_add_u32 v{vEidxA}, v{vEidxA}, v{vRecA}")
    a(f"  v_and_b32 v{vW0}, 7, v{vT2}\n  v_lshlrev_b32 v{vW0}, 1, v{vW0}")
    a(f"  v_lshrrev_b32 v{vEIDX}, 1, v{vT3}\n  v_xor_b32 v{vEIDX}, v{vEIDX}, v{vW0}\n  v_lshlrev_b32 v{vEIDX}, 4, v{vEIDX}")
    a(f"  v_and_b32 v{vW0}, 1, v{vT3}\n  v_lshl_add_u32 v{vEIDX}, v{vW0}, 3, v{vEIDX}")
    a(f"  v_lshl_add_u32 v{vEIDX}, v{vT2}, 8, v{vEIDX}\n  v_add_u32 v{vEIDX}, {L_WMIX}, v{vEIDX}")
    a("  s_waitcnt lgkmcnt(0)")
    for tile in range(2):
        for s in range(4):
            for h in range(2):
                d = eA + tile * 16 + s * 4 + h * 2
                if tile == 0:
                    a(f"  ds_read_b64_tr_b16 v[{d}:{d+1}], v{vEidxA} offset:{(32*s+16*h)*8}")
                else:
                    a(f"  ds_read_b64_tr_b16 v[{d}:{d+1}], v{vRecA} offset:{4*AGG_STRIDE+(32*s+16*h)*8}")
    a(f"  s_mul_i32 s{sT0}, s2, {NPB}\n  s_mul_i32 s{sT1}, s{sWAVE}, 5\n  s_add_u32 s{sT0}, s{sT0}, s{sT1}\n  s_lshl_b32 s{sT0}, s{sT0}, 10")
    a(f"  s_add_u32 s{sT1}, s{sT0}, 4096")
    a(f"  v_and_b32 v{vT3}, 15, v{vLane}\n  v_lshlrev_b32 v{vT3}, 3, v{vT3}\n  v_lshl_add_u32 v{vT3}, v{vT1}, 10, v{vT3}")
    eBb = [vROW, vROW + 16]
    eD = vACC
    def bload(ct):
        a(f"  v_xor_b32 v{vW0}, {ct*32}, v{vEIDX}")
        for s in range(4):
            for h in range(2):
                d = eBb[ct % 2] + s * 4 + h * 2
                a(f"  ds_read_b64_tr_b16 v[{d}:{d+1}], v{vW0} offset:{(32*s+16*h)*256}")
    bload(0)
    for ct in range(8):
        if ct + 1 < 8:
            bload(ct + 1)
            a("  s_waitcnt lgkmcnt(8)")
        else:
            a("  s_waitcnt lgkmcnt(0)")
        for tile in range(2):
            d = eD + (ct % 2) * 8 + tile * 4
            for s in range(4):
                c = "0" if s == 0 else f"v[{d}:{d+3}]"
                A_ = eA + tile * 16 + s * 4
                B_ = eBb[ct % 2] + s * 4
                a(f"  v_mfma_f32_16x16x32_bf16 v[{d}:{d+3}], v[{A_}:{A_+3}], v[{B_}:{B_+3}], {c}")
        if ct > 0:
            store_ct(a, ct - 1, eD, vT, vT3, sOUT, sT0, sT1)
    a("  s_nop 7")
    store_ct(a, 7, eD, vT, vT3, sOUT, sT0, sT1)
    if stamps:
        stamp(5)
        a("  s_waitcnt lgkmcnt(0)")
        for i in range(6):
            a(f"  v_mov_b32 v{vT+0}, s{sST+2*i}\n  v_mov_b32 v{vT+1}, s{sST+2*i+1}")
            a(f"  s_lshl_b32 s{sT0}, s2, 3\n  s_add_u32 s{sT0}, s{sT0}, s{sWAVE}\n  s_mul_i32 s{sT0}, s{sT0}, 64\n  s_add_u32 s{sT0}, s{sT0}, {STAMP_OFF + 8*i}")
            a(f"  v_mov_b32 v{vT+2}, 0")
            a(f"  s_mov_b32 s{sOFFSRD}, s6\n  s_mov_b32 s{sOFFSRD+1}, s7\n  s_mov_b32 s{sOFFSRD+2}, 0x10000000\n  s_mov_b32 s{sOFFSRD+3}, 0x20000")
            a(f"  buffer_store_dwordx2 v[{vT}:{vT+1}], v{vT+2}, s[{sOFFSRD}:{sOFFSRD+3}], s{sT0} offen")
            a("  s_waitcnt vmcnt(0)")
    a("L2_end:")
    a("  s_endpgm")
    return NV, NS

STAMP_OFF = 0x4000000
STAMP1_OFF = 0x4100000

def store_ct(a, ct, eD, vT, vOff, sOUT, sT0, sT1):
    for tile in range(2):
        d = eD + (ct % 2) * 8 + tile * 4
        p = vT + 2 * tile
        a(f"  v_cvt_pk_bf16_f32 v{p}, v{d}, v{d+1}")
        a(f"  v_cvt_pk_bf16_f32 v{p+1}, v{d+2}, v{d+3}")
    a(f"  buffer_store_dwordx2 v[{vT}:{vT+1}], v{vOff}, s[{sOUT}:{sOUT+3}], s{sT0} offen offset:{ct*128}")
    a("  s_mov_b64 exec, 0xffff")
    a(f"  buffer_store_dwordx2 v[{vT+2}:{vT+3}], v{vOff}, s[{sOUT}:{sOUT+3}], s{sT1} offen offset:{ct*128}")
    a("  s_mov_b64 exec, -1")

def build(opt):
    a = A()
    a(f"; @launch kernel={K1} grid=({NCH},1,1) block=({CH},1,1) lds={opt.get('lds1', 2048)}")
    a(f"; @launch kernel={K2} grid=({NB},1,1) block=(512,1,1) lds={LDS2}")
    a('.amdgcn_target "amdgcn-amd-amdhsa--gfx950"')
    a(".text")
    gen_k1(a, opt)
    nv, ns = gen_k2(a, opt)
    a('.section .rodata,"a"\n.p2align 6')
    a(kd(K1, 48, 64))
    a(".p2align 6")
    a(kd(K2, nv, ns))
    return a.text()

if __name__ == "__main__":
    out = sys.argv[1] if len(sys.argv) > 1 else "gather_scatter__tensor_product_equiv_tfn__graph.s"
    opt = {}
    for x in sys.argv[2:]:
        k, _, val = x.partition("=")
        opt[k] = int(val) if val else True
    open(out, "w").write(build(opt))
    print("wrote", out, "LDS2 =", LDS2)
```

```python
import sys

N, E, C = 10000, 160000, 128
NB, NPB = 250, 40
NCH, CH = 250, 640
OFFS = 0
RECS = 0x40000
EFS = RECS + E * 16
WS_USED = EFS + E * 32
STAMP_OFF, STAMP1_OFF = 0x4000000, 0x4100000
K1 = "bin_edges_kernel"
K2 = "gather_scatter__tensor_product_equiv_tfn__graph_kernel"

class A:
    def __init__(self): self.L = []
    def __call__(self, s):
        for line in s.strip("\n").split("\n"): self.L.append(line)
    def text(self): return "\n".join(self.L) + "\n"

class V:
    def __init__(self, start=1): self.n = start
    def get(self, cnt=1, align=1):
        self.n = (self.n + align - 1) // align * align
        r = self.n; self.n += cnt
        return r

def srd(a, r, lo, size):
    a(f"  s_mov_b32 s{r}, s{lo}\n  s_mov_b32 s{r+1}, s{lo+1}\n  s_mov_b32 s{r+2}, {size}\n  s_mov_b32 s{r+3}, 0x20000")

def wave_scan(a, v, op="v_add_u32"):
    for ctl in ("row_shr:1", "row_shr:2", "row_shr:4", "row_shr:8"):
        a(f"  s_nop 1\n  {op}_dpp v{v}, v{v}, v{v} {ctl} row_mask:0xf bank_mask:0xf bound_ctrl:0")
    a(f"  s_nop 1\n  {op}_dpp v{v}, v{v}, v{v} row_bcast:15 row_mask:0xa bank_mask:0xf")
    a(f"  s_nop 1\n  {op}_dpp v{v}, v{v}, v{v} row_bcast:31 row_mask:0xc bank_mask:0xf")

def hwslot(a, dst, tmp):
    a(f"  s_getreg_b32 s{dst}, hwreg(HW_REG_HW_ID, 13, 2)")
    a(f"  s_getreg_b32 s{tmp}, hwreg(HW_REG_HW_ID, 8, 4)")
    a(f"  s_mul_i32 s{dst}, s{dst}, 9\n  s_add_u32 s{dst}, s{dst}, s{tmp}")

def kd(name, nv, ns):
    return f""".amdhsa_kernel {name}
  .amdhsa_next_free_vgpr {nv}
  .amdhsa_next_free_sgpr {ns}
  .amdhsa_accum_offset {min((nv + 3) // 4 * 4, 256)}
  .amdhsa_group_segment_fixed_size 0
  .amdhsa_kernarg_size 88
  .amdhsa_user_sgpr_count 2
  .amdhsa_user_sgpr_kernarg_segment_ptr 1
  .amdhsa_system_sgpr_workgroup_id_x 1
  .amdhsa_float_denorm_mode_32 3
.end_amdhsa_kernel"""

K1_CNT, K1_BASE, K1_INV, K1_HDR, K1_EF = 0, 1024, 2048, 4608, 14848
K1_LDS = K1_EF + CH * 32

def gen_k1(a, opt):
    P1 = opt.get("p1", 0)
    stamps = opt.get("stamps", False)
    def stamp(i):
        if stamps: a(f"  s_memrealtime s[{48+2*i}:{48+2*i+1}]")
    sSRC, sDST, sY, sWS, sX, sEF = 16, 20, 24, 28, 36, 44
    a(f".globl {K1}\n.p2align 8\n.type {K1},@function\n{K1}:")
    a(f"  s_cmp_ge_u32 s2, {NCH}\n  s_cbranch_scc1 L1_end")
    stamp(0)
    a("  s_load_dwordx4 s[4:7], s[0:1], 8")
    a("  s_load_dwordx4 s[8:11], s[0:1], 24")
    a("  s_load_dwordx2 s[40:41], s[0:1], 80")
    a("  s_load_dwordx2 s[32:33], s[0:1], 0")
    a("  v_lshlrev_b32 v1, 2, v0\n  v_mov_b32 v2, 0\n  v_lshrrev_b32 v21, 6, v0")
    a("  v_cmp_gt_u32 vcc, 256, v0\n  s_and_saveexec_b64 s[12:13], vcc")
    a(f"  ds_write_b32 v1, v2 offset:{K1_CNT}")
    a("  s_mov_b64 exec, s[12:13]")
    a(f"  s_mul_i32 s14, s2, {CH}")
    a("  v_add_u32 v3, s14, v0")
    a("  v_readfirstlane_b32 s15, v21")
    a("  v_lshlrev_b32 v4, 2, v3\n  v_lshlrev_b32 v5, 3, v3")
    a("  v_and_b32 v22, 63, v0\n  v_lshlrev_b32 v22, 4, v22")
    a("  s_waitcnt lgkmcnt(0)")
    srd(a, sDST, 6, E * 4)
    a(f"  buffer_load_dword v6, v4, s[{sDST}:{sDST+3}], 0 offen")
    srd(a, sSRC, 4, E * 4)
    a(f"  buffer_load_dword v7, v4, s[{sSRC}:{sSRC+3}], 0 offen")
    srd(a, sY, 8, E * 8)
    a(f"  buffer_load_dwordx2 v[10:11], v5, s[{sY}:{sY+3}], 0 offen")
    srd(a, sWS, 40, WS_USED)
    srd(a, sEF, 10, E * 32)
    srd(a, sX, 32, N * 1024)
    a(f"  s_lshl_b32 s12, s15, 11\n  s_mul_i32 s13, s2, {CH*32}\n  s_add_u32 s13, s13, s12")
    def efdma():
        for i in range(2):
            a(f"  s_add_u32 m0, s12, {K1_EF + 1024*i}")
            a("  s_nop 0")
            a(f"  buffer_load_dwordx4 v22, s[{sEF}:{sEF+3}], s13 offen offset:0 lds")
            if i == 0: a("  s_add_u32 s13, s13, 1024")
    PACK = opt.get("pack", 1)
    if not PACK:
        def efdma(): pass
    if not opt.get("k1late"): efdma()
    if P1:
        hwslot(a, 34, 35)
        a(f"  s_mul_i32 s34, s34, 10\n  s_add_u32 s34, s34, s15\n  s_add_u32 s34, s34, {360*(P1-1)}\n  s_lshl_b32 s34, s34, 10")
    a("  s_barrier")
    nd = 0 if (opt.get("k1late") or not PACK) else 2
    ND = 2 if PACK else 0
    a(f"  s_waitcnt vmcnt({2+nd})")
    stamp(1)
    if opt.get("k1late"): efdma()
    for k in range(P1):
        a(f"  buffer_load_dwordx4 v[40:43], v22, s[{sX}:{sX+3}], s34 offen")
        if k + 1 < P1: a(f"  s_sub_u32 s34, s34, {360*1024}")
    a("  v_mul_u32_u24 v12, 52429, v6\n  v_lshrrev_b32 v12, 21, v12\n  v_min_u32 v12, 255, v12")
    a("  v_and_b32 v16, 7, v12\n  v_lshlrev_b32 v16, 7, v16")
    a("  v_lshrrev_b32 v17, 3, v12\n  v_lshl_add_u32 v16, v17, 2, v16")
    a("  v_mov_b32 v17, 1")
    a(f"  ds_add_rtn_u32 v18, v16, v17 offset:{K1_CNT}")
    a("  v_mul_u32_u24 v13, 40, v12\n  v_sub_u32 v13, v6, v13")
    a("  v_mul_u32_u24 v14, 52, v13\n  v_lshrrev_b32 v14, 8, v14")
    a("  v_mul_u32_u24 v15, 5, v14\n  v_sub_u32 v15, v13, v15")
    a("  v_lshlrev_b32 v14, 7, v14\n  v_lshl_or_b32 v14, v15, 3, v14")
    a(f"  s_waitcnt vmcnt({1 + ND + P1})")
    a("  v_lshl_or_b32 v8, v7, 10, v14")
    a("  s_waitcnt lgkmcnt(0)")
    a("  s_barrier")
    stamp(2)
    a("  s_cmp_lg_u32 s15, 0\n  s_cbranch_scc1 L1_noscan")
    a(f"  ds_read_b128 v[24:27], v22 offset:{K1_CNT}")
    a("  s_waitcnt lgkmcnt(0)")
    a("  v_add_u32 v28, v24, v25\n  v_add_u32 v29, v28, v26\n  v_add_u32 v30, v29, v27\n  v_mov_b32 v31, v30")
    wave_scan(a, 31)
    a("  v_sub_u32 v32, v31, v30\n  v_add_u32 v33, v32, v24\n  v_add_u32 v34, v32, v28\n  v_add_u32 v35, v32, v29")
    a(f"  ds_write_b128 v22, v[32:35] offset:{K1_BASE}")
    a("  v_lshl_or_b32 v36, v24, 16, v32\n  v_lshl_or_b32 v37, v25, 16, v33\n  v_lshl_or_b32 v38, v26, 16, v34\n  v_lshl_or_b32 v39, v27, 16, v35")
    a("  s_lshl_b32 s12, s2, 10")
    a(f"  buffer_store_dwordx4 v[36:39], v22, s[{sWS}:{sWS+3}], s12 offen offset:{OFFS}")
    a("  s_waitcnt lgkmcnt(0)")
    a("L1_noscan:")
    a("  s_barrier")
    stamp(3)
    a(f"  ds_read_b32 v19, v16 offset:{K1_BASE}")
    a("  s_waitcnt lgkmcnt(0)")
    a("  v_add_u32 v19, v19, v18")
    if not PACK:
        a("  v_lshlrev_b32 v9, 5, v3\n  v_add_u32 v19, s14, v19\n  v_lshlrev_b32 v19, 4, v19")
        a(f"  s_mov_b32 s12, {RECS}")
        a("  s_cmp_lg_u32 s15, 0\n  s_cbranch_scc1 L1_u1")
        a(f"  s_waitcnt vmcnt({P1+1})\n  s_branch L1_u2")
        a("L1_u1:")
        a(f"  s_waitcnt vmcnt({P1})")
        a("L1_u2:")
        a(f"  buffer_store_dwordx4 v[8:11], v19, s[{sWS}:{sWS+3}], s12 offen")
        a("  s_branch L1_fin")
    a("  v_add_u32 v9, s14, v19\n  v_lshlrev_b32 v9, 5, v9")
    a("  v_lshlrev_b32 v20, 4, v19\n  v_lshlrev_b32 v19, 2, v19")
    a(f"  ds_write_b32 v19, v0 offset:{K1_INV}")
    a("  s_cmp_lg_u32 s15, 0\n  s_cbranch_scc1 L1_w1")
    a(f"  s_waitcnt vmcnt({P1+1})\n  s_branch L1_w2")
    a("L1_w1:")
    a(f"  s_waitcnt vmcnt({P1})")
    a("L1_w2:")
    a(f"  ds_write_b128 v20, v[8:11] offset:{K1_HDR}")
    a("  s_waitcnt lgkmcnt(0)")
    a("  s_barrier")
    a("  v_lshlrev_b32 v20, 4, v0")
    a("  v_lshrrev_b32 v19, 1, v0\n  v_lshlrev_b32 v19, 2, v19")
    a(f"  ds_read_b32 v24, v19 offset:{K1_INV}")
    a(f"  ds_read_b32 v25, v19 offset:{K1_INV + 1280}")
    a(f"  ds_read_b128 v[8:11], v20 offset:{K1_HDR}")
    a("  v_and_b32 v19, 1, v0\n  v_lshlrev_b32 v19, 4, v19")
    a(f"  s_lshl_b32 s12, s14, 4\n  s_add_u32 s12, s12, {RECS}")
    a(f"  s_lshl_b32 s13, s14, 5\n  s_add_u32 s13, s13, {EFS}")
    a("  s_waitcnt lgkmcnt(1)")
    a("  v_lshl_add_u32 v24, v24, 5, v19\n  v_lshl_add_u32 v25, v25, 5, v19")
    a(f"  ds_read_b128 v[28:31], v24 offset:{K1_EF}")
    a(f"  ds_read_b128 v[32:35], v25 offset:{K1_EF}")
    a("  s_waitcnt lgkmcnt(2)")
    a(f"  buffer_store_dwordx4 v[8:11], v20, s[{sWS}:{sWS+3}], s12 offen")
    a("  s_waitcnt lgkmcnt(1)")
    a(f"  buffer_store_dwordx4 v[28:31], v20, s[{sWS}:{sWS+3}], s13 offen")
    a(f"  s_add_u32 s13, s13, {CH*16}")
    a("  s_waitcnt lgkmcnt(0)")
    a(f"  buffer_store_dwordx4 v[32:35], v20, s[{sWS}:{sWS+3}], s13 offen")
    a("L1_fin:")
    if stamps:
        stamp(4)
        a("  s_waitcnt vmcnt(0)")
        stamp(5)
        a("  s_waitcnt lgkmcnt(0)")
        a("  s_mov_b32 s44, s40\n  s_mov_b32 s45, s41\n  s_mov_b32 s46, 0x10000000\n  s_mov_b32 s47, 0x20000")
        a(f"  s_mul_i32 s12, s2, 10\n  s_add_u32 s12, s12, s15\n  s_mul_i32 s12, s12, 64\n  s_add_u32 s12, s12, {STAMP1_OFF}")
        a("  v_mov_b32 v2, 0")
        for i in range(6):
            a(f"  v_mov_b32 v20, s{48+2*i}\n  v_mov_b32 v21, s{48+2*i+1}")
            a(f"  buffer_store_dwordx2 v[20:21], v2, s[44:47], s12 offen offset:{8*i}")
            a("  s_waitcnt vmcnt(0)")
    a("L1_end:")
    a("  s_endpgm")

L_CNT = 0
L_FLAG = 2048
L_ZERO = L_FLAG + 16
CAPFILL = 256
CAPW = CAPFILL + 32
L_LIST = 4096
L_WMIX = L_LIST + 8 * CAPW * 16
L_EFL = L_WMIX + 128 * 256
AGG_STRIDE = 1088
LDS2 = L_EFL + 8 * CAPW * 32
DUMMY_W0 = 0x7FFFFC00 | 40
DUMMY_W1 = 0x7FFFFFE0

def gen_k2(a, opt):
    stamps = opt.get("stamps", False)
    P2 = opt.get("p2", 0); R1 = 360 * opt.get("p1", 0)
    NR = 8
    v = V(1)
    vLane = v.get(); vL16 = v.get(); vT0 = v.get(); vT1 = v.get(); vT2 = v.get(); vT3 = v.get()
    vLen = v.get(); vRecOff = v.get(); vJ = v.get()
    vRecA = v.get(); vA1A = v.get(); vA2A = v.get(); vInc1 = v.get(); vInc2 = v.get(); vW0 = v.get()
    vREC = v.get(4, 4)
    vKP = v.get(2, 2); vKPn = v.get(2, 2)
    vA = v.get(8, 4)
    vCG = v.get(8, 2)
    vWB = v.get(16, 4)
    vRR = v.get(8, 2); vT = v.get(8, 2)
    vZZ = v.get(64, 4)
    vACC = v.get(48, 4)
    vROW = v.get(32, 4)
    vTP = v.get(32, 4)
    NV = v.n
    assert NV <= 256, NV
    pREC = vROW; pKEY = vTP; pRANK = vTP + 8; pBASE = vTP + 16
    pW = vACC; pC = vACC + 16
    vOL = vTP + 24; vRem = vTP + 25; vD0 = vTP + 26; vD1 = vTP + 27
    vPF = vZZ + 32
    sX, sWS, sOUT, sTMP = 8, 12, 20, 24
    sEFLW = 16; sLISTW = 17; sPF = 18; sNODE = 19
    sWAVE, sN, sG, sKB, sSTEP, sMAXL, sT0, sT1, sFLAG = 28, 29, 30, 31, 32, 33, 35, 36, 37
    sNLOG = 38; sM = 40; sW = 56; sO = 72; sSAVE = 76; sP1 = 78; sP2 = 79; sOFFSRD = 80; sST = 88
    NS = 102
    def stamp(i):
        if stamps:
            if opt.get("clk") and i in (1, 2): return
            a(f"  s_memrealtime s[{sST+2*i}:{sST+2*i+1}]")
            if opt.get("clk") and i in (3, 4): a(f"  s_memtime s[{sST+2*(i-2)}:{sST+2*(i-2)+1}]")

    a(f".globl {K2}\n.p2align 8\n.type {K2},@function\n{K2}:")
    a(f"  s_cmp_ge_u32 s2, {NB}\n  s_cbranch_scc1 L2_end")
    stamp(0)
    a("  s_load_dwordx2 s[6:7], s[0:1], 80")
    a("  s_load_dwordx2 s[4:5], s[0:1], 0")
    a("  s_load_dwordx4 s[84:87], s[0:1], 40")
    a("  s_load_dwordx4 s[40:43], s[0:1], 56")
    PACK = opt.get("pack", 1)
    if not PACK: a("  s_load_dwordx2 s[44:45], s[0:1], 32")
    a(f"  v_and_b32 v{vLane}, 63, v0\n  v_lshrrev_b32 v{vT0}, 6, v0\n  v_lshlrev_b32 v{vL16}, 4, v{vLane}")
    a(f"  v_readfirstlane_b32 s{sWAVE}, v{vT0}")
    a(f"  v_lshlrev_b32 v{vT1}, 2, v0\n  v_mov_b32 v{vT2}, 0")
    a(f"  ds_write_b32 v{vT1}, v{vT2} offset:{L_CNT}")
    a(f"  v_cmp_gt_u32 vcc, 16, v0\n  s_and_saveexec_b64 s[{sSAVE}:{sSAVE+1}], vcc")
    a(f"  ds_write_b32 v{vT1}, v{vT2} offset:{L_FLAG}")
    a(f"  s_mov_b64 exec, s[{sSAVE}:{sSAVE+1}]")
    a(f"  v_lshrrev_b32 v{vT0}, 1, v0\n  v_and_b32 v{vJ}, 1, v0")
    a(f"  s_and_b32 s{sT0}, s2, 7\n  s_lshl_b32 s{sT0}, s{sT0}, 5\n  s_lshr_b32 s{sT1}, s2, 3\n  s_add_u32 s{sT0}, s{sT0}, s{sT1}\n  s_lshl_b32 s{sT0}, s{sT0}, 2")
    a(f"  v_lshlrev_b32 v{vT3}, 10, v{vT0}\n  v_mul_u32_u24 v{vRecOff}, {CH}, v{vT0}")
    a(f"  v_lshrrev_b32 v{vT0}, 4, v{vLane}\n  v_and_b32 v{vT1}, 15, v{vLane}\n  v_lshlrev_b32 v{vT2}, 1, v{vT0}")
    a(f"  v_xor_b32 v{vD0}, v{vT1}, v{vT2}\n  v_xor_b32 v{vD1}, 8, v{vD0}\n  v_lshlrev_b32 v{vT0}, 8, v{vT0}")
    a(f"  v_lshl_add_u32 v{vD0}, v{vD0}, 4, v{vT0}\n  v_lshl_add_u32 v{vD1}, v{vD1}, 4, v{vT0}")
    a("  s_waitcnt lgkmcnt(0)")
    srd(a, sOFFSRD, 6, NCH * 1024)
    a(f"  buffer_load_dword v{vOL}, v{vT3}, s[{sOFFSRD}:{sOFFSRD+3}], s{sT0} offen")
    srd(a, sX, 4, N * 1024)
    if P2:
        hwslot(a, sPF, sT1)
        a(f"  s_lshl_b32 s{sPF}, s{sPF}, 3\n  s_add_u32 s{sPF}, s{sPF}, s{sWAVE}\n  s_add_u32 s{sPF}, s{sPF}, {R1 + 288*(P2-1)}\n  s_lshl_b32 s{sPF}, s{sPF}, 10")
    srd(a, sWS, 6, WS_USED)
    srd(a, sOUT, 42, N * 1024)
    sFE = sWS
    if not PACK:
        sFE = 0 if False else 4
        if stamps: a("  s_mov_b32 s100, s6\n  s_mov_b32 s101, s7")
        srd(a, sFE, 44, E * 32)
    srd(a, sTMP, 84, 16 * C * 2)
    a(f"  v_lshrrev_b32 v{vT1}, 5, v{vLane}\n  v_lshlrev_b32 v{vT1}, 11, v{vT1}\n  v_and_b32 v{vT2}, 31, v{vLane}\n  v_lshl_add_u32 v{vT1}, v{vT2}, 2, v{vT1}")
    for half in range(2):
        for j in range(8):
            a(f"  buffer_load_dword v{pW+8*half+j}, v{vT1}, s[{sTMP}:{sTMP+3}], 0 offen offset:{j*256+half*128}")
    srd(a, sOFFSRD, 86, 128)
    a(f"  v_and_b32 v{vT2}, 3, v{vLane}\n  v_lshlrev_b32 v{vT2}, 1, v{vT2}")
    for i in range(4):
        for f in range(4):
            a(f"  buffer_load_ushort v{pC+4*i+f}, v{vT2}, s[{sOFFSRD}:{sOFFSRD+3}], 0 offen offset:{(i*16+f*4)*2}")
    srd(a, sTMP, 40, C * C * 2)
    a(f"  s_lshl_b32 s{sT1}, s{sWAVE}, 12")
    for i in range(4):
        a(f"  s_add_u32 m0, s{sT1}, {L_WMIX}\n  s_nop 0")
        a(f"  buffer_load_dwordx4 v{vD0 if i % 2 == 0 else vD1}, s[{sTMP}:{sTMP+3}], s{sT1} offen lds")
        if i < 3: a(f"  s_add_u32 s{sT1}, s{sT1}, 1024")
    NAUX = 36
    for k in range(P2):
        a(f"  buffer_load_dwordx4 v[{vPF}:{vPF+3}], v{vL16}, s[{sX}:{sX+3}], s{sPF} offen")
        if k + 1 < P2: a(f"  s_sub_u32 s{sPF}, s{sPF}, {288*1024}")
    a("  s_barrier")
    a(f"  s_mul_i32 s{sLISTW}, s{sWAVE}, {CAPW*16}\n  s_add_u32 s{sLISTW}, s{sLISTW}, {L_LIST}")
    a(f"  s_mul_i32 s{sEFLW}, s{sWAVE}, {CAPW*32}\n  s_add_u32 s{sEFLW}, s{sEFLW}, {L_EFL}")
    a(f"  s_mov_b32 s{sNLOG}, 0xbfb8aa3b\n  s_mov_b32 s{sNLOG+1}, 0xbfb8aa3b")
    a(f"  s_mov_b32 s{sP1}, 0x05040100\n  s_mov_b32 s{sP2}, 0x07060302")
    a(f"  s_mov_b32 s{sKB}, 0\n  s_mov_b32 s{sSTEP}, {2*NR}")
    a(f"  s_waitcnt vmcnt({NAUX + P2})")
    stamp(1)
    a(f"  v_lshrrev_b32 v{vLen}, 16, v{vOL}\n  v_and_b32 v{vOL}, 0xffff, v{vOL}")
    a(f"  v_add3_u32 v{vRecOff}, v{vRecOff}, v{vOL}, v{vJ}\n  v_lshlrev_b32 v{vRecOff}, 4, v{vRecOff}")

    def rec_masks():
        a(f"  s_add_u32 s{sT0}, s{sKB}, s{sSTEP}")
        a(f"  v_min_u32 v{vRem}, s{sT0}, v{vLen}\n  v_subrev_u32 v{vRem}, s{sKB}, v{vRem}\n  v_sub_u32 v{vRem}, v{vRem}, v{vJ}")
        a(f"  s_lshl_b32 s{sT0}, s{sKB}, 4\n  s_add_u32 s{sT0}, s{sT0}, {RECS}")
        for r in range(NR):
            a(f"  v_cmp_lt_i32 s[{sM+2*r}:{sM+2*r+1}], {2*r}, v{vRem}")
        a("  s_nop 3")
    def rec_load(r):
        a(f"  s_mov_b64 exec, s[{sM+2*r}:{sM+2*r+1}]")
        a(f"  buffer_load_dwordx4 v[{pREC+4*r}:{pREC+4*r+3}], v{vRecOff}, s[{sWS}:{sWS+3}], s{sT0} offen offset:{32*r}")

    rec_masks()
    for r in range(NR):
        a(f"  s_cmp_eq_u64 s[{sM+2*r}:{sM+2*r+1}], 0\n  s_cbranch_scc1 L2_first_{r}")
        rec_load(r)
    for r in range(NR, -1, -1):
        a(f"L2_first_{r}:")
        a("  s_mov_b64 exec, -1")
        a(f"  s_waitcnt vmcnt({r})")
        if r > 0: a("  s_branch L2_stage")
    a("L2_stage:")
    a(f"  v_cmp_lt_u32 vcc, {2*NR}, v{vLen}\n  s_and_saveexec_b64 s[{sSAVE}:{sSAVE+1}], vcc")
    a(f"  s_cbranch_execz L2_nomax")
    a(f"  v_mov_b32 v{vT1}, {L_FLAG+4}\n  ds_max_u32 v{vT1}, v{vLen}")
    a(f"L2_nomax:")
    a(f"  s_mov_b64 exec, s[{sSAVE}:{sSAVE+1}]")
    for t in range(2):
        for half in range(2):
            for jj in range(4):
                a(f"  v_perm_b32 v{vWB+(t*2+half)*4+jj}, v{pW+8*half+2*jj+1}, v{pW+8*half+2*jj}, s{sP1 if t == 0 else sP2}")
    for i in range(4):
        a(f"  v_lshl_or_b32 v{vCG+2*i}, v{pC+4*i+1}, 16, v{pC+4*i}")
        a(f"  v_lshl_or_b32 v{vCG+2*i+1}, v{pC+4*i+3}, 16, v{pC+4*i+2}")
    for r in range(48):
        a(f"  v_mov_b32 v{vACC+r}, 0")
    a("  s_waitcnt vmcnt(0)")
    stamp(2)
    a("  s_branch L2_pass_keys")

    a("L2_pass:")
    rec_masks()
    for r in range(NR):
        a(f"  s_cmp_eq_u64 s[{sM+2*r}:{sM+2*r+1}], 0\n  s_cbranch_scc1 L2_ld_done")
        rec_load(r)
    a("L2_ld_done:")
    a("  s_mov_b64 exec, -1\n  s_waitcnt vmcnt(0)")
    a("L2_pass_keys:")
    a(f"  v_mov_b32 v{vT3}, 1")
    for r in range(NR):
        a(f"  s_cmp_eq_u64 s[{sM+2*r}:{sM+2*r+1}], 0\n  s_cbranch_scc1 L2_key_done")
        a(f"  s_mov_b64 exec, s[{sM+2*r}:{sM+2*r+1}]")
        w0 = pREC + 4 * r
        a(f"  v_bfe_u32 v{vT0}, v{w0}, 7, 3\n  v_lshrrev_b32 v{vT1}, 18, v{w0}\n  v_lshlrev_b32 v{vT1}, 2, v{vT1}")
        a(f"  v_lshl_add_u32 v{pKEY+r}, v{vT0}, 8, v{vT1}")
        a(f"  ds_add_rtn_u32 v{pRANK+r}, v{pKEY+r}, v{vT3} offset:{L_CNT}")
    a("L2_key_done:")
    a("  s_mov_b64 exec, -1\n  s_waitcnt lgkmcnt(0)\n  s_barrier")
    a(f"  s_lshl_b32 s{sT0}, s{sWAVE}, 8\n  v_lshl_add_u32 v{vT0}, v{vLane}, 2, s{sT0}")
    a(f"  ds_read_b32 v{vT1}, v{vT0} offset:{L_CNT}\n  s_waitcnt lgkmcnt(0)\n  v_mov_b32 v{vT2}, v{vT1}")
    wave_scan(a, vT2)
    a(f"  v_sub_u32 v{vT1}, v{vT2}, v{vT1}")
    a(f"  v_readlane_b32 s{sN}, v{vT2}, 63")
    a(f"  ds_write_b32 v{vT0}, v{vT1} offset:{L_CNT}")
    a(f"  s_cmp_gt_u32 s{sN}, {CAPFILL}\n  s_cbranch_scc0 L2_noovf")
    a(f"  v_mov_b32 v{vT0}, {L_FLAG}\n  v_mov_b32 v{vT1}, 1\n  ds_write_b32 v{vT0}, v{vT1}")
    a("  s_branch L2_padded")
    a("L2_noovf:")
    a(f"  s_lshl_b32 s{sT0}, s{sN}, 4\n  s_add_u32 s{sT0}, s{sT0}, s{sLISTW}\n  v_add_u32 v{vT0}, s{sT0}, v{vL16}")
    a(f"  v_mov_b32 v{vREC}, {DUMMY_W0}\n  v_mov_b32 v{vREC+1}, {DUMMY_W1}\n  v_mov_b32 v{vREC+2}, 0\n  v_mov_b32 v{vREC+3}, 0")
    a(f"  s_mov_b32 exec_hi, 0\n  ds_write_b128 v{vT0}, v[{vREC}:{vREC+3}]\n  s_mov_b64 exec, -1")
    a("L2_padded:")
    a("  s_waitcnt lgkmcnt(0)\n  s_barrier")
    a(f"  v_mov_b32 v{vT0}, {L_FLAG}\n  ds_read_b64 v[{vKPn}:{vKPn+1}], v{vT0}")
    for r in range(NR):
        a(f"  s_cmp_eq_u64 s[{sM+2*r}:{sM+2*r+1}], 0\n  s_cbranch_scc1 L2_base_done")
        a(f"  s_mov_b64 exec, s[{sM+2*r}:{sM+2*r+1}]")
        a(f"  ds_read_b32 v{pBASE+r}, v{pKEY+r} offset:{L_CNT}")
    a("L2_base_done:")
    a("  s_mov_b64 exec, -1\n  s_waitcnt lgkmcnt(0)")
    a(f"  v_readfirstlane_b32 s{sFLAG}, v{vKPn}\n  v_readfirstlane_b32 s{sMAXL}, v{vKPn+1}")
    a(f"  s_cmp_lg_u32 s{sFLAG}, 0\n  s_cbranch_scc1 L2_overflow")
    for r in range(NR):
        a(f"  s_cmp_eq_u64 s[{sM+2*r}:{sM+2*r+1}], 0\n  s_cbranch_scc1 L2_scat_done")
        a(f"  s_mov_b64 exec, s[{sM+2*r}:{sM+2*r+1}]")
        w0 = pREC + 4 * r
        a(f"  v_lshrrev_b32 v{vT0}, 8, v{pKEY+r}\n  v_mul_u32_u24 v{vT0}, {CAPW*16}, v{vT0}")
        a(f"  v_add_u32 v{vT1}, v{pBASE+r}, v{pRANK+r}\n  v_lshl_add_u32 v{vT0}, v{vT1}, 4, v{vT0}")
        a(f"  v_and_b32 v{w0}, 0xfffffc7f, v{w0}")
        a(f"  ds_write_b128 v{vT0}, v[{w0}:{w0+3}] offset:{L_LIST}")
    a("L2_scat_done:")
    a("  s_mov_b64 exec, -1\n  s_waitcnt lgkmcnt(0)\n  s_barrier")
    stamp(3)

    def kcompute(dst, tmp):
        for i in range(4): a(f"  v_dot2_f32_bf16 v{tmp+i}, v{vREC+3}, v{vCG+2*i+1}, 0")
        for i in range(4): a(f"  v_dot2_f32_bf16 v{tmp+i}, v{vREC+2}, v{vCG+2*i}, v{tmp+i}")
        a("  s_nop 2")
        a(f"  v_cvt_pk_bf16_f32 v{dst}, v{tmp}, v{tmp+1}\n  v_cvt_pk_bf16_f32 v{dst+1}, v{tmp+2}, v{tmp+3}")
    def bigm(i, zb):
        t, half = i >> 1, i & 1
        z = vZZ + 32 * zb + 16 * t
        c = "0" if half == 0 else f"v[{z}:{z+15}]"
        A_ = vA + 4 * half; B_ = vWB + (t * 2 + half) * 4
        return f"  v_mfma_f32_32x32x16_bf16 v[{z}:{z+15}], v[{A_}:{A_+3}], v[{B_}:{B_+3}], {c}"
    def aread():
        a(f"  ds_read_b128 v[{vA}:{vA+3}], v{vA1A}\n  ds_read_b128 v[{vA+4}:{vA+7}], v{vA2A}")
        a(f"  v_add_u32 v{vA1A}, v{vA1A}, v{vInc1}\n  v_add_u32 v{vA2A}, v{vA2A}, v{vInc2}")
    def rowload(slot, so):
        a(f"  buffer_load_dwordx4 v[{vROW+4*slot}:{vROW+4*slot+3}], v{vL16}, s[{sX}:{sX+3}], s{so} offen{' nt' if opt.get('xnt') else ''}")
    def rowoff(dst, src):
        if opt.get("nomem"): a(f"  s_and_b32 s{dst}, s{src}, 0x3c00")
        else: a(f"  s_andn2_b32 s{dst}, s{src}, 63")

    if opt.get("prio") == 1:
        a(f"  s_cmp_ge_u32 s{sWAVE}, 4\n  s_cbranch_scc0 L2_noprio\n  s_setprio 1\nL2_noprio:")
    a(f"  s_cmp_eq_u32 s{sN}, 0\n  s_cbranch_scc1 L2_loop_exit")
    a(f"  s_add_u32 s{sG}, s{sN}, 3\n  s_lshr_b32 s{sG}, s{sG}, 2")
    a(f"  v_lshrrev_b32 v{vT0}, 2, v{vLane}\n  v_lshlrev_b32 v{vT0}, 4, v{vT0}\n  v_add_u32 v{vRecA}, s{sLISTW}, v{vT0}")
    a(f"  ds_read_b128 v[{vREC}:{vREC+3}], v{vRecA}")
    a(f"  v_lshrrev_b32 v{vT0}, 1, v{vLane}\n  v_lshlrev_b32 v{vT0}, 4, v{vT0}\n  v_add_u32 v{vT0}, s{sLISTW}, v{vT0}")
    for i in range(4):
        a(f"  ds_read_b32 v{vT+i}, v{vT0} offset:{i*512+4}")
    a(f"  v_and_b32 v{vT1}, 1, v{vLane}\n  v_lshlrev_b32 v{vT1}, 4, v{vT1}")
    a(f"  v_bfe_u32 v{vT2}, v{vLane}, 3, 2\n  v_lshlrev_b32 v{vT2}, 2, v{vT2}\n  v_and_b32 v{vT3}, 3, v{vLane}\n  v_add_u32 v{vT2}, v{vT2}, v{vT3}")
    a(f"  v_lshlrev_b32 v{vT2}, 5, v{vT2}\n  v_lshrrev_b32 v{vT3}, 5, v{vLane}\n  v_lshl_add_u32 v{vT2}, v{vT3}, 4, v{vT2}\n  v_add_u32 v{vT2}, s{sEFLW}, v{vT2}")
    a(f"  v_and_b32 v{vT3}, 4, v{vLane}\n  v_cmp_eq_u32 vcc, 0, v{vT3}")
    a(f"  v_mov_b32 v{vT3}, {L_ZERO}\n  v_mov_b32 v{vInc2}, 512\n  v_mov_b32 v{vW0}, 0")
    a(f"  v_cndmask_b32 v{vA1A}, v{vT3}, v{vT2}, vcc\n  v_cndmask_b32 v{vA2A}, v{vT2}, v{vT3}, vcc")
    a(f"  v_cndmask_b32 v{vInc1}, v{vW0}, v{vInc2}, vcc\n  v_cndmask_b32 v{vInc2}, v{vInc2}, v{vW0}, vcc")
    a(f"  s_mov_b32 s{sT1}, {EFS if PACK else 0}\n  s_mov_b32 m0, s{sEFLW}")
    a("  s_waitcnt lgkmcnt(0)")
    for i in range(4):
        if i > 0:
            a(f"  s_cmp_le_u32 s{sN}, {32*i}\n  s_cbranch_scc1 L2_dma_done")
            a(f"  s_add_u32 m0, s{sEFLW}, {1024*i}")
        a(f"  v_add_u32 v{vT+i}, v{vT+i}, v{vT1}")
        a(f"  buffer_load_dwordx4 v{vT+i}, s[{sFE}:{sFE+3}], s{sT1} offen lds")
    a(f"  s_movk_i32 s{sT0}, 128")
    a("L2_dma_more:")
    a(f"  s_cmp_le_u32 s{sN}, s{sT0}\n  s_cbranch_scc1 L2_dma_done")
    a(f"  s_lshl_b32 s{sO}, s{sT0}, 4\n  v_add_u32 v{vT}, s{sO}, v{vT0}\n  ds_read_b32 v{vT}, v{vT} offset:4")
    a(f"  s_lshl_b32 s{sO}, s{sT0}, 5\n  s_add_u32 m0, s{sEFLW}, s{sO}\n  s_waitcnt lgkmcnt(0)")
    a(f"  v_add_u32 v{vT}, v{vT}, v{vT1}")
    a(f"  buffer_load_dwordx4 v{vT}, s[{sFE}:{sFE+3}], s{sT1} offen lds")
    a(f"  s_add_u32 s{sT0}, s{sT0}, 32\n  s_branch L2_dma_more")
    a("L2_dma_done:")
    for j in range(8):
        a(f"  v_readlane_b32 s{sW+j}, v{vREC}, {4*j}")
        rowoff(sO, sW + j)
        rowload(j, sO)
    a(f"  v_mov_b32 v{vW0}, v{vREC}")
    kcompute(vKP, vTP)
    a(f"  v_add_u32 v{vRecA}, 256, v{vRecA}")
    a("  s_waitcnt vmcnt(8)")
    aread()
    a("  s_waitcnt lgkmcnt(0)")
    for i in range(4): a(bigm(i, 0))
    a("  s_nop 7")
    aread()
    a("  s_nop 7")
    def inter(x, y):
        for i in range(max(len(x), len(y))):
            if i < len(x): a(x[i])
            if i < len(y): a(y[i])
    for cb in range(2):
        a(f"L2_batch{cb}:")
        for gi in range(4):
            z0 = vZZ + 32 * cb + 4 * gi; z1 = z0 + 16
            zp = [z0, z0 + 2, z1, z1 + 2]
            nset = (gi + 2) % 4
            if gi == 0:
                a("  s_waitcnt lgkmcnt(0)")
                a(f"  ds_read_b128 v[{vREC}:{vREC+3}], v{vRecA}")
            if gi == 1:
                a("  s_waitcnt lgkmcnt(0)")
            sm = [f"  v_pk_mul_f32 v[{vT+2*p}:{vT+2*p+1}], v[{zp[p]}:{zp[p]+1}], s[{sNLOG}:{sNLOG+1}]" for p in range(4)]
            ex = [f"  v_exp_f32 v{vT+i}, v{vT+i}" for i in range(8)]
            sa = [f"  v_pk_add_f32 v[{vT+2*p}:{vT+2*p+1}], v[{vT+2*p}:{vT+2*p+1}], 1.0 op_sel_hi:[1,0]" for p in range(4)]
            rc = [f"  v_rcp_f32 v{vT+i}, v{vT+i}" for i in range(8)]
            sr = [f"  v_pk_mul_f32 v[{vRR+2*p}:{vRR+2*p+1}], v[{zp[p]}:{zp[p]+1}], v[{vT+2*p}:{vT+2*p+1}]" for p in range(4)]
            rl = []
            for q in range(4):
                src, ln = (vW0, 4 * (4 * (gi + 2) + q)) if gi < 2 else (vREC, 4 * (4 * (gi - 2) + q))
                rl.append(f"  v_readlane_b32 s{sW+4*nset+q}, v{src}, {ln}")
            tp = []
            for r in range(4):
                sl = (gi % 2) * 4 + r
                for t in range(2):
                    tp.append(f"  v_mfma_f32_4x4x4_16b_bf16 v[{vTP+8*r+4*t}:{vTP+8*r+4*t+3}], v[{vKP}:{vKP+1}], v[{vROW+4*sl+2*t}:{vROW+4*sl+2*t+1}], 0 cbsz:4 abid:{4*gi+r}")
            for x in sm: a(x)
            inter(ex, [bigm(gi, 1 - cb)])
            for x in sa: a(x)
            for x in rl: a(x)
            if gi == 1: kcompute(vKPn, vTP)
            if gi == 3: aread()
            a("  s_waitcnt vmcnt(4)")
            inter(tp, rc)
            for r in range(4): rowoff(sO + r, sW + 4 * nset + r)
            for r in range(4): rowload((gi % 2) * 4 + r, sO + r)
            for x in sr: a(x)
            for r in range(4):
                a(f"  s_set_gpr_idx_on s{sW+4*gi+r}, gpr_idx(SRC2,DST)" if r == 0 else f"  s_set_gpr_idx_idx s{sW+4*gi+r}")
                for t in range(2):
                    rr = vRR + 4 * t + (r & ~1)
                    sel = "op_sel:[0,1,0] op_sel_hi:[1,1,1]" if r & 1 else "op_sel:[0,0,0] op_sel_hi:[1,0,1]"
                    for h in range(2):
                        d = vACC + 4 * t + 2 * h; tpp = vTP + 8 * r + 4 * t + 2 * h
                        a(f"  v_pk_fma_f32 v[{d}:{d+1}], v[{tpp}:{tpp+1}], v[{rr}:{rr+1}], v[{d}:{d+1}] {sel}")
            a("  s_set_gpr_idx_off")
            if gi == 3:
                a(f"  v_mov_b32 v{vKP}, v{vKPn}\n  v_mov_b32 v{vKP+1}, v{vKPn+1}\n  v_mov_b32 v{vW0}, v{vREC}")
                a(f"  v_add_u32 v{vRecA}, 256, v{vRecA}")
            a(f"  s_sub_u32 s{sG}, s{sG}, 1\n  s_cmp_eq_u32 s{sG}, 0")
            if gi == 3 and cb == 1: a("  s_cbranch_scc0 L2_batch0")
            else: a("  s_cbranch_scc1 L2_loop_exit")
    a("L2_loop_exit:")
    a("  s_waitcnt vmcnt(0) lgkmcnt(0)")
    stamp(4)
    a(f"  s_add_u32 s{sKB}, s{sKB}, s{sSTEP}\n  s_cmp_lt_u32 s{sKB}, s{sMAXL}\n  s_cbranch_scc0 L2_epilogue")
    a("L2_rezero:")
    a("  s_barrier")
    a(f"  v_lshlrev_b32 v{vT1}, 2, v0\n  v_mov_b32 v{vT2}, 0\n  ds_write_b32 v{vT1}, v{vT2} offset:{L_CNT}")
    a(f"  v_mov_b32 v{vT1}, {L_FLAG}\n  ds_write_b32 v{vT1}, v{vT2}")
    a(f"  v_mov_b32 v{vT1}, {L_FLAG+4}\n  ds_max_u32 v{vT1}, v{vLen}")
    a("  s_waitcnt lgkmcnt(0)\n  s_barrier\n  s_branch L2_pass")
    a("L2_overflow:")
    a(f"  s_mov_b32 s{sSTEP}, 1\n  s_branch L2_rezero")

    a("L2_epilogue:")
    eA = vTP; eBb = [vROW, vROW + 16]; eD = vACC
    vAa, vAb, vBa, vBx, vOut = vRecA, vA1A, vA2A, vW0, vInc1
    a(f"  v_add_u32 v{vT0}, s{sEFLW}, v{vL16}")
    for s in range(5):
        b = vACC + 8 * s; p = vROW + 4 * (s % 2)
        for i in range(4): a(f"  v_cvt_pk_bf16_f32 v{p+i}, v{b+2*i}, v{b+2*i+1}")
        a(f"  ds_write_b128 v{vT0}, v[{p}:{p+3}] offset:{s*AGG_STRIDE}")
        a("  s_nop 1")
    a(f"  v_lshrrev_b32 v{vT1}, 4, v{vLane}\n  v_bfe_u32 v{vT2}, v{vLane}, 2, 2\n  v_lshl_add_u32 v{vT2}, v{vT1}, 2, v{vT2}\n  v_and_b32 v{vT3}, 3, v{vLane}")
    a(f"  v_lshlrev_b32 v{vAa}, 3, v{vT2}\n  v_add_u32 v{vAa}, s{sEFLW}, v{vAa}")
    a(f"  v_mul_u32_u24 v{vAb}, {AGG_STRIDE}, v{vT3}\n  v_add_u32 v{vAb}, v{vAb}, v{vAa}")
    a(f"  v_and_b32 v{vBx}, 7, v{vT2}\n  v_lshlrev_b32 v{vBx}, 1, v{vBx}")
    a(f"  v_lshrrev_b32 v{vBa}, 1, v{vT3}\n  v_xor_b32 v{vBa}, v{vBa}, v{vBx}\n  v_lshlrev_b32 v{vBa}, 4, v{vBa}")
    a(f"  v_and_b32 v{vBx}, 1, v{vT3}\n  v_lshl_add_u32 v{vBa}, v{vBx}, 3, v{vBa}")
    a(f"  v_lshl_add_u32 v{vBa}, v{vT2}, 8, v{vBa}\n  v_add_u32 v{vBa}, {L_WMIX}, v{vBa}")
    a("  s_waitcnt lgkmcnt(0)")
    for tile in range(2):
        for s in range(4):
            for h in range(2):
                d = eA + tile * 16 + s * 4 + h * 2
                if tile == 0: a(f"  ds_read_b64_tr_b16 v[{d}:{d+1}], v{vAb} offset:{(32*s+16*h)*8}")
                else: a(f"  ds_read_b64_tr_b16 v[{d}:{d+1}], v{vAa} offset:{4*AGG_STRIDE+(32*s+16*h)*8}")
    a(f"  s_mul_i32 s{sT0}, s2, {NPB}\n  s_mul_i32 s{sT1}, s{sWAVE}, 5\n  s_add_u32 s{sT0}, s{sT0}, s{sT1}\n  s_lshl_b32 s{sT0}, s{sT0}, 10")
    a(f"  s_add_u32 s{sT1}, s{sT0}, 4096")
    a(f"  v_and_b32 v{vOut}, 15, v{vLane}\n  v_lshlrev_b32 v{vOut}, 3, v{vOut}\n  v_lshl_add_u32 v{vOut}, v{vT1}, 10, v{vOut}")
    def bload(ct):
        a(f"  v_xor_b32 v{vBx}, {ct*32}, v{vBa}")
        for s in range(4):
            for h in range(2):
                d = eBb[ct % 2] + s * 4 + h * 2
                a(f"  ds_read_b64_tr_b16 v[{d}:{d+1}], v{vBx} offset:{(32*s+16*h)*256}")
    def store_ct(ct):
        for tile in range(2):
            d = eD + (ct % 2) * 8 + tile * 4; p = vT + 2 * tile
            a(f"  v_cvt_pk_bf16_f32 v{p}, v{d}, v{d+1}\n  v_cvt_pk_bf16_f32 v{p+1}, v{d+2}, v{d+3}")
        a(f"  buffer_store_dwordx2 v[{vT}:{vT+1}], v{vOut}, s[{sOUT}:{sOUT+3}], s{sT0} offen offset:{ct*128}")
        a("  s_mov_b64 exec, 0xffff")
        a(f"  buffer_store_dwordx2 v[{vT+2}:{vT+3}], v{vOut}, s[{sOUT}:{sOUT+3}], s{sT1} offen offset:{ct*128}")
        a("  s_mov_b64 exec, -1")
    bload(0)
    for ct in range(8):
        if ct + 1 < 8:
            bload(ct + 1)
            a("  s_waitcnt lgkmcnt(8)")
        else:
            a("  s_waitcnt lgkmcnt(0)")
        for tile in range(2):
            d = eD + (ct % 2) * 8 + tile * 4
            for s in range(4):
                c = "0" if s == 0 else f"v[{d}:{d+3}]"
                A_ = eA + tile * 16 + s * 4; B_ = eBb[ct % 2] + s * 4
                a(f"  v_mfma_f32_16x16x32_bf16 v[{d}:{d+3}], v[{A_}:{A_+3}], v[{B_}:{B_+3}], {c}")
        if ct > 0: store_ct(ct - 1)
    a("  s_nop 7")
    store_ct(7)
    if stamps:
        stamp(5)
        a("  s_waitcnt lgkmcnt(0)")
        ws0, ws1 = (6, 7) if PACK else (100, 101)
        a(f"  s_mov_b32 s{sOFFSRD}, s{ws0}\n  s_mov_b32 s{sOFFSRD+1}, s{ws1}\n  s_mov_b32 s{sOFFSRD+2}, 0x10000000\n  s_mov_b32 s{sOFFSRD+3}, 0x20000")
        a(f"  s_lshl_b32 s{sT0}, s2, 3\n  s_add_u32 s{sT0}, s{sT0}, s{sWAVE}\n  s_mul_i32 s{sT0}, s{sT0}, 64\n  s_add_u32 s{sT0}, s{sT0}, {STAMP_OFF}")
        a(f"  v_mov_b32 v{vT+2}, 0")
        for i in range(6):
            a(f"  v_mov_b32 v{vT+0}, s{sST+2*i}\n  v_mov_b32 v{vT+1}, s{sST+2*i+1}")
            a(f"  buffer_store_dwordx2 v[{vT}:{vT+1}], v{vT+2}, s[{sOFFSRD}:{sOFFSRD+3}], s{sT0} offen offset:{8*i}")
            a("  s_waitcnt vmcnt(0)")
    a("L2_end:")
    a("  s_endpgm")
    return NV, NS

def build(opt):
    a = A()
    a(f"; @launch kernel={K1} grid=({NCH},1,1) block=({CH},1,1) lds={max(K1_LDS, opt.get('lds1', 0))}")
    a(f"; @launch kernel={K2} grid=({NB},1,1) block=(512,1,1) lds={LDS2}")
    a('.amdgcn_target "amdgcn-amd-amdhsa--gfx950"')
    a(".text")
    gen_k1(a, opt)
    nv, ns = gen_k2(a, opt)
    a('.section .rodata,"a"\n.p2align 6')
    a(kd(K1, 48, 64))
    a(".p2align 6")
    a(kd(K2, nv, ns))
    return a.text(), nv

if __name__ == "__main__":
    out = sys.argv[1]
    opt = {}
    for x in sys.argv[2:]:
        k, _, val = x.partition("=")
        opt[k] = int(val) if val else True
    t, nv = build(opt)
    open(out, "w").write(t)
    print("wrote", out, "LDS2 =", LDS2, "NV =", nv)
```

```python
import sys

N, E, C = 10000, 160000, 128
NB, NPB = 256, 40
NCH, CH = 250, 640
OFFS = 0
RECS = 0x40000
EFS = RECS + E * 16
WS_USED = EFS + E * 32
STAMP_OFF, STAMP1_OFF = 0x4000000, 0x4100000
K1 = "bin_edges_kernel"
K2 = "gather_scatter__tensor_product_equiv_tfn__graph_kernel"

class A:
    def __init__(self): self.L = []
    def __call__(self, s):
        for line in s.strip("\n").split("\n"): self.L.append(line)
    def text(self): return "\n".join(self.L) + "\n"

class V:
    def __init__(self, start=1): self.n = start
    def get(self, cnt=1, align=1):
        self.n = (self.n + align - 1) // align * align
        r = self.n; self.n += cnt
        return r

def srd(a, r, lo, size):
    a(f"  s_mov_b32 s{r}, s{lo}\n  s_mov_b32 s{r+1}, s{lo+1}\n  s_mov_b32 s{r+2}, {size}\n  s_mov_b32 s{r+3}, 0x20000")

def wave_scan(a, v, op="v_add_u32"):
    for ctl in ("row_shr:1", "row_shr:2", "row_shr:4", "row_shr:8"):
        a(f"  s_nop 1\n  {op}_dpp v{v}, v{v}, v{v} {ctl} row_mask:0xf bank_mask:0xf bound_ctrl:0")
    a(f"  s_nop 1\n  {op}_dpp v{v}, v{v}, v{v} row_bcast:15 row_mask:0xa bank_mask:0xf")
    a(f"  s_nop 1\n  {op}_dpp v{v}, v{v}, v{v} row_bcast:31 row_mask:0xc bank_mask:0xf")

def hwslot(a, dst, tmp):
    a(f"  s_getreg_b32 s{dst}, hwreg(HW_REG_HW_ID, 13, 2)")
    a(f"  s_getreg_b32 s{tmp}, hwreg(HW_REG_HW_ID, 8, 4)")
    a(f"  s_mul_i32 s{dst}, s{dst}, 9\n  s_add_u32 s{dst}, s{dst}, s{tmp}")

def kd(name, nv, ns):
    return f""".amdhsa_kernel {name}
  .amdhsa_next_free_vgpr {nv}
  .amdhsa_next_free_sgpr {ns}
  .amdhsa_accum_offset {min((nv + 3) // 4 * 4, 256)}
  .amdhsa_group_segment_fixed_size 0
  .amdhsa_kernarg_size 88
  .amdhsa_user_sgpr_count 2
  .amdhsa_user_sgpr_kernarg_segment_ptr 1
  .amdhsa_system_sgpr_workgroup_id_x 1
  .amdhsa_float_denorm_mode_32 3
.end_amdhsa_kernel"""

K1_CNT, K1_BASE, K1_INV, K1_HDR, K1_EF = 0, 1024, 2048, 4608, 14848
K1_LDS = K1_EF + CH * 32

def gen_k1(a, opt):
    P1 = opt.get("p1", 0)
    stamps = opt.get("stamps", False)
    def stamp(i):
        if stamps: a(f"  s_memrealtime s[{48+2*i}:{48+2*i+1}]")
    sSRC, sDST, sY, sWS, sX, sEF = 16, 20, 24, 28, 36, 44
    a(f".globl {K1}\n.p2align 8\n.type {K1},@function\n{K1}:")
    a(f"  s_cmp_ge_u32 s2, {NCH}\n  s_cbranch_scc1 L1_end")
    stamp(0)
    a("  s_load_dwordx4 s[4:7], s[0:1], 8")
    a("  s_load_dwordx4 s[8:11], s[0:1], 24")
    a("  s_load_dwordx2 s[40:41], s[0:1], 80")
    a("  s_load_dwordx2 s[32:33], s[0:1], 0")
    a("  v_lshlrev_b32 v1, 2, v0\n  v_mov_b32 v2, 0\n  v_lshrrev_b32 v21, 6, v0")
    a("  v_cmp_gt_u32 vcc, 256, v0\n  s_and_saveexec_b64 s[12:13], vcc")
    a(f"  ds_write_b32 v1, v2 offset:{K1_CNT}")
    a("  s_mov_b64 exec, s[12:13]")
    a(f"  s_mul_i32 s14, s2, {CH}")
    a("  v_add_u32 v3, s14, v0")
    a("  v_readfirstlane_b32 s15, v21")
    a("  v_lshlrev_b32 v4, 2, v3\n  v_lshlrev_b32 v5, 3, v3")
    a("  v_and_b32 v22, 63, v0\n  v_lshlrev_b32 v22, 4, v22")
    a("  s_waitcnt lgkmcnt(0)")
    srd(a, sDST, 6, E * 4)
    a(f"  buffer_load_dword v6, v4, s[{sDST}:{sDST+3}], 0 offen")
    srd(a, sSRC, 4, E * 4)
    a(f"  buffer_load_dword v7, v4, s[{sSRC}:{sSRC+3}], 0 offen")
    srd(a, sY, 8, E * 8)
    a(f"  buffer_load_dwordx2 v[10:11], v5, s[{sY}:{sY+3}], 0 offen")
    srd(a, sWS, 40, WS_USED)
    srd(a, sEF, 10, E * 32)
    srd(a, sX, 32, N * 1024)
    a(f"  s_lshl_b32 s12, s15, 11\n  s_mul_i32 s13, s2, {CH*32}\n  s_add_u32 s13, s13, s12")
    def efdma():
        for i in range(2):
            a(f"  s_add_u32 m0, s12, {K1_EF + 1024*i}")
            a("  s_nop 0")
            a(f"  buffer_load_dwordx4 v22, s[{sEF}:{sEF+3}], s13 offen offset:0 lds")
            if i == 0: a("  s_add_u32 s13, s13, 1024")
    PACK = opt.get("pack", 1)
    if not PACK:
        def efdma(): pass
    if not opt.get("k1late"): efdma()
    if P1:
        hwslot(a, 34, 35)
        a(f"  s_mul_i32 s34, s34, 10\n  s_add_u32 s34, s34, s15\n  s_add_u32 s34, s34, {360*(P1-1)}\n  s_lshl_b32 s34, s34, 10")
    PT = 1 if opt.get("pretouch") else 0
    if PT:
        a("  s_mov_b64 exec, 1")
        a(f"  buffer_load_dword v44, v22, s[{sX}:{sX+3}], s34 offen")
        a("  s_mov_b64 exec, -1")
    TLBW = opt.get("tlbw", 0)
    if TLBW:
        a("  s_load_dwordx2 s[62:63], s[0:1], 64")
        a("  s_lshr_b32 s34, s2, 3\n  s_mul_i32 s34, s34, 5\n  v_and_b32 v23, 63, v0\n  v_add_u32 v23, s34, v23\n  v_lshlrev_b32 v23, 16, v23")
        a("  s_waitcnt lgkmcnt(0)")
        srd(a, 56, 62, N * 1024)
        a("  s_cmp_lg_u32 s15, 1\n  s_cbranch_scc1 L1_notlb")
        a("  s_mov_b64 exec, 0x1f")
        a(f"  buffer_load_dword v44, v23, s[{sX}:{sX+3}], 0 offen")
        a(f"  buffer_load_dword v45, v23, s[{sEF}:{sEF+3}], 0 offen")
        a(f"  buffer_load_dword v46, v23, s[56:59], 0 offen")
        a("  s_mov_b64 exec, -1")
        a("  s_waitcnt vmcnt(0)")
        a("L1_notlb:")
    a("  s_barrier")
    nd = 0 if (opt.get("k1late") or not PACK) else 2
    ND = 2 if PACK else 0
    a(f"  s_waitcnt vmcnt({2+nd+PT})")
    stamp(1)
    if opt.get("k1late"): efdma()
    PFPOS = opt.get("pfpos", 0)
    def pf1():
        for k in range(P1):
            a(f"  buffer_load_dwordx4 v[40:43], v22, s[{sX}:{sX+3}], s34 offen")
            if k + 1 < P1: a(f"  s_sub_u32 s34, s34, {360*1024}")
    if PFPOS == 0: pf1()
    P1a = P1 if PFPOS == 0 else 0
    a("  s_mov_b32 s35, 109951163\n  v_mul_hi_u32 v12, s35, v6\n  v_min_u32 v12, 255, v12")
    a("  v_and_b32 v16, 7, v12\n  v_lshlrev_b32 v16, 7, v16")
    a("  v_lshrrev_b32 v17, 3, v12\n  v_lshl_add_u32 v16, v17, 2, v16")
    a("  v_mov_b32 v17, 1")
    a(f"  ds_add_rtn_u32 v18, v16, v17 offset:{K1_CNT}")
    a("  v_mul_u32_u24 v13, 625, v12\n  v_add_u32 v13, 15, v13\n  v_lshrrev_b32 v13, 4, v13\n  v_sub_u32 v13, v6, v13")
    a("  v_mov_b32 v14, v13")
    a(f"  s_waitcnt vmcnt({1 + ND + P1a + PT})")
    a("  v_lshl_or_b32 v8, v7, 10, v14")
    if PFPOS == 1: pf1()
    a("  s_waitcnt lgkmcnt(0)")
    a("  s_barrier")
    stamp(2)
    if PFPOS == 2: pf1()
    a("  s_cmp_lg_u32 s15, 0\n  s_cbranch_scc1 L1_noscan")
    a(f"  ds_read_b128 v[24:27], v22 offset:{K1_CNT}")
    a("  s_waitcnt lgkmcnt(0)")
    a("  v_add_u32 v28, v24, v25\n  v_add_u32 v29, v28, v26\n  v_add_u32 v30, v29, v27\n  v_mov_b32 v31, v30")
    wave_scan(a, 31)
    a("  v_sub_u32 v32, v31, v30\n  v_add_u32 v33, v32, v24\n  v_add_u32 v34, v32, v28\n  v_add_u32 v35, v32, v29")
    a(f"  ds_write_b128 v22, v[32:35] offset:{K1_BASE}")
    a("  v_lshl_or_b32 v36, v24, 16, v32\n  v_lshl_or_b32 v37, v25, 16, v33\n  v_lshl_or_b32 v38, v26, 16, v34\n  v_lshl_or_b32 v39, v27, 16, v35")
    a("  s_lshl_b32 s12, s2, 10")
    a(f"  buffer_store_dwordx4 v[36:39], v22, s[{sWS}:{sWS+3}], s12 offen offset:{OFFS}")
    a("  s_waitcnt lgkmcnt(0)")
    a("L1_noscan:")
    a("  s_barrier")
    stamp(3)
    a(f"  ds_read_b32 v19, v16 offset:{K1_BASE}")
    a("  s_waitcnt lgkmcnt(0)")
    a("  v_add_u32 v19, v19, v18")
    if not PACK:
        a("  v_lshlrev_b32 v9, 5, v3\n  v_add_u32 v19, s14, v19\n  v_lshlrev_b32 v19, 4, v19")
        a(f"  s_mov_b32 s12, {RECS}")
        a("  s_cmp_lg_u32 s15, 0\n  s_cbranch_scc1 L1_u1")
        a(f"  s_waitcnt vmcnt({P1+1})\n  s_branch L1_u2")
        a("L1_u1:")
        a(f"  s_waitcnt vmcnt({P1})")
        a("L1_u2:")
        a(f"  buffer_store_dwordx4 v[8:11], v19, s[{sWS}:{sWS+3}], s12 offen")
        a("  s_branch L1_fin")
    a("  v_add_u32 v9, s14, v19\n  v_lshlrev_b32 v9, 5, v9")
    a("  v_lshlrev_b32 v20, 4, v19\n  v_lshlrev_b32 v19, 2, v19")
    a(f"  ds_write_b32 v19, v0 offset:{K1_INV}")
    a("  s_cmp_lg_u32 s15, 0\n  s_cbranch_scc1 L1_w1")
    a(f"  s_waitcnt vmcnt({P1+1})\n  s_branch L1_w2")
    a("L1_w1:")
    a(f"  s_waitcnt vmcnt({P1})")
    a("L1_w2:")
    a(f"  ds_write_b128 v20, v[8:11] offset:{K1_HDR}")
    a("  s_waitcnt lgkmcnt(0)")
    a("  s_barrier")
    a("  v_lshlrev_b32 v20, 4, v0")
    a("  v_lshrrev_b32 v19, 1, v0\n  v_lshlrev_b32 v19, 2, v19")
    a(f"  ds_read_b32 v24, v19 offset:{K1_INV}")
    a(f"  ds_read_b32 v25, v19 offset:{K1_INV + 1280}")
    a(f"  ds_read_b128 v[8:11], v20 offset:{K1_HDR}")
    a("  v_and_b32 v19, 1, v0\n  v_lshlrev_b32 v19, 4, v19")
    a(f"  s_lshl_b32 s12, s14, 4\n  s_add_u32 s12, s12, {RECS}")
    a(f"  s_lshl_b32 s13, s14, 5\n  s_add_u32 s13, s13, {EFS}")
    a("  s_waitcnt lgkmcnt(1)")
    a("  v_lshl_add_u32 v24, v24, 5, v19\n  v_lshl_add_u32 v25, v25, 5, v19")
    a(f"  ds_read_b128 v[28:31], v24 offset:{K1_EF}")
    a(f"  ds_read_b128 v[32:35], v25 offset:{K1_EF}")
    a("  s_waitcnt lgkmcnt(2)")
    a(f"  buffer_store_dwordx4 v[8:11], v20, s[{sWS}:{sWS+3}], s12 offen")
    a("  s_waitcnt lgkmcnt(1)")
    a(f"  buffer_store_dwordx4 v[28:31], v20, s[{sWS}:{sWS+3}], s13 offen")
    a(f"  s_add_u32 s13, s13, {CH*16}")
    a("  s_waitcnt lgkmcnt(0)")
    a(f"  buffer_store_dwordx4 v[32:35], v20, s[{sWS}:{sWS+3}], s13 offen")
    a("L1_fin:")
    if stamps:
        stamp(4)
        a("  s_waitcnt vmcnt(0)")
        stamp(5)
        a("  s_waitcnt lgkmcnt(0)")
        a("  s_mov_b32 s44, s40\n  s_mov_b32 s45, s41\n  s_mov_b32 s46, 0x10000000\n  s_mov_b32 s47, 0x20000")
        a(f"  s_mul_i32 s12, s2, 10\n  s_add_u32 s12, s12, s15\n  s_mul_i32 s12, s12, 64\n  s_add_u32 s12, s12, {STAMP1_OFF}")
        a("  v_mov_b32 v2, 0")
        for i in range(6):
            a(f"  v_mov_b32 v20, s{48+2*i}\n  v_mov_b32 v21, s{48+2*i+1}")
            a(f"  buffer_store_dwordx2 v[20:21], v2, s[44:47], s12 offen offset:{8*i}")
            a("  s_waitcnt vmcnt(0)")
    a("L1_end:")
    a("  s_endpgm")

L_CNT = 0
L_FLAG = 2048
L_ZERO = L_FLAG + 16
L_DEG = L_FLAG + 128
L_RANK = L_DEG + 256
L_INV = L_RANK + 256
CAPFILL = 256
CAPW = CAPFILL + 32
L_LIST = 4096
L_WMIX = L_LIST + 8 * CAPW * 16
L_EFL = L_WMIX + 128 * 256
AGG_STRIDE = 1088
L_WRAD = L_EFL + 8 * CAPW * 32
LDS2 = L_WRAD + 4096 + 256
DUMMY_W0 = 0x7FFFFC00 | 40
DUMMY_W1 = 0x7FFFFFE0

def gen_k2(a, opt):
    stamps = opt.get("stamps", False)
    R1 = 360 * opt.get("p1", 0)
    NR = 8
    v = V(1)
    vLane = v.get(); vL16 = v.get(); vT0 = v.get(); vT1 = v.get(); vT2 = v.get(); vT3 = v.get()
    vLen = v.get(); vRecOff = v.get(); vJ = v.get()
    vRecA = v.get(); vA1A = v.get(); vA2A = v.get(); vInc1 = v.get(); vInc2 = v.get(); vW0 = v.get()
    vREC = v.get(4, 4)
    vKP = v.get(2, 2); vKPn = v.get(2, 2)
    vA = v.get(8, 4)
    vCG = v.get(8, 2)
    vWB = v.get(16, 4)
    vRR = v.get(8, 2); vT = v.get(8, 2)
    vZZ = v.get(64, 4)
    vACC = v.get(48, 4)
    vROW = v.get(32, 4)
    vTP = v.get(32, 4)
    NV = v.n
    assert NV <= 256, NV
    pREC = vROW; pKEY = vTP; pRANK = vTP + 8; pBASE = vTP + 16
    pW = vZZ
    vOL = vTP + 24; vRem = vTP + 25; vD0 = vTP + 26; vD1 = vTP + 27
    vPF = vZZ + 32
    sX, sWS, sOUT, sTMP = 8, 12, 20, 24
    sEFLW = 16; sLISTW = 17; sPF = 18; sNODE = 19
    sWAVE, sN, sG, sKB, sSTEP, sMAXL, sT0, sT1, sFLAG = 28, 29, 30, 31, 32, 33, 35, 36, 37
    sNLOG = 38; sM = 40; sW = 56; sO = 72; sSAVE = 76; sP1 = 78; sP2 = 79; sOFFSRD = 80; sST = 88
    NS = 102
    def stamp(i):
        if stamps:
            if opt.get("clk") and i in (1, 2): return
            a(f"  s_memrealtime s[{sST+2*i}:{sST+2*i+1}]")
            if opt.get("clk") and i in (3, 4): a(f"  s_memtime s[{sST+2*(i-2)}:{sST+2*(i-2)+1}]")

    a(f".globl {K2}\n.p2align 8\n.type {K2},@function\n{K2}:")
    a(f"  s_cmp_ge_u32 s2, {NB}\n  s_cbranch_scc1 L2_end")
    stamp(0)
    PACK = opt.get("pack", 1)
    PFA = opt.get("pfa", 0); PFB = opt.get("pfb", 0)
    a("  s_load_dwordx2 s[6:7], s[0:1], 80")
    a("  s_load_dwordx2 s[4:5], s[0:1], 0")
    a("  s_load_dwordx4 s[84:87], s[0:1], 40")
    a("  s_load_dwordx4 s[40:43], s[0:1], 56")
    if not PACK: a("  s_load_dwordx2 s[44:45], s[0:1], 32")
    a(f"  v_and_b32 v{vLane}, 63, v0\n  v_lshrrev_b32 v{vT0}, 6, v0\n  v_lshlrev_b32 v{vL16}, 4, v{vLane}")
    a(f"  v_readfirstlane_b32 s{sWAVE}, v{vT0}")
    a(f"  v_lshlrev_b32 v{vT1}, 2, v0\n  v_mov_b32 v{vT2}, 0")
    a(f"  ds_write_b32 v{vT1}, v{vT2} offset:{L_CNT}")
    a(f"  v_cmp_gt_u32 vcc, 16, v0\n  s_and_saveexec_b64 s[{sSAVE}:{sSAVE+1}], vcc")
    a(f"  ds_write_b32 v{vT1}, v{vT2} offset:{L_FLAG}")
    a(f"  s_mov_b64 exec, s[{sSAVE}:{sSAVE+1}]")
    a(f"  v_cmp_gt_u32 vcc, 64, v0\n  s_and_saveexec_b64 s[{sSAVE}:{sSAVE+1}], vcc")
    a(f"  ds_write_b32 v{vT1}, v0 offset:{L_DEG}\n  ds_write_b32 v{vT1}, v{vT2} offset:{L_RANK}")
    a(f"  s_mov_b64 exec, s[{sSAVE}:{sSAVE+1}]")
    a(f"  v_lshrrev_b32 v{vT0}, 1, v0\n  v_and_b32 v{vJ}, 1, v0")
    a(f"  s_and_b32 s{sT0}, s2, 7\n  s_lshl_b32 s{sT0}, s{sT0}, 5\n  s_lshr_b32 s{sT1}, s2, 3\n  s_add_u32 s{sT0}, s{sT0}, s{sT1}\n  s_lshl_b32 s{sT0}, s{sT0}, 2")
    a(f"  v_lshlrev_b32 v{vT3}, 10, v{vT0}\n  v_mul_u32_u24 v{vRecOff}, {CH}, v{vT0}")
    a(f"  v_lshrrev_b32 v{vT0}, 4, v{vLane}\n  v_and_b32 v{vT1}, 15, v{vLane}\n  v_lshlrev_b32 v{vT2}, 1, v{vT0}")
    a(f"  v_xor_b32 v{vD0}, v{vT1}, v{vT2}\n  v_xor_b32 v{vD1}, 8, v{vD0}\n  v_lshlrev_b32 v{vT0}, 8, v{vT0}")
    a(f"  v_lshl_add_u32 v{vD0}, v{vD0}, 4, v{vT0}\n  v_lshl_add_u32 v{vD1}, v{vD1}, 4, v{vT0}")
    a(f"  s_mul_i32 s{sLISTW}, s{sWAVE}, {CAPW*16}\n  s_add_u32 s{sLISTW}, s{sLISTW}, {L_LIST}")
    a(f"  s_mul_i32 s{sEFLW}, s{sWAVE}, {CAPW*32}\n  s_add_u32 s{sEFLW}, s{sEFLW}, {L_EFL}")
    if PFA + PFB:
        hwslot(a, sPF, sT1)
        a(f"  s_lshl_b32 s{sPF}, s{sPF}, 3\n  s_add_u32 s{sPF}, s{sPF}, s{sWAVE}\n  s_add_u32 s{sPF}, s{sPF}, {R1}\n  s_lshl_b32 s{sPF}, s{sPF}, 10")
    a("  s_waitcnt lgkmcnt(0)")
    srd(a, sOFFSRD, 6, NCH * 1024)
    a(f"  buffer_load_dword v{vOL}, v{vT3}, s[{sOFFSRD}:{sOFFSRD+3}], s{sT0} offen")
    srd(a, sTMP, 84, 16 * C * 2)
    a(f"  s_lshl_b32 s{sT1}, s{sWAVE}, 10\n  s_add_u32 m0, s{sT1}, {L_WRAD}")
    a(f"  s_cmp_ge_u32 s{sWAVE}, 4\n  s_cbranch_scc0 L2_aux_go")
    srd(a, sTMP, 86, 128)
    a(f"  s_mov_b32 s{sT1}, 0\n  s_mov_b32 m0, {L_WRAD+4096}\n  s_mov_b64 exec, 0xff")
    a(f"  s_cmp_eq_u32 s{sWAVE}, 4\n  s_cbranch_scc1 L2_aux_go")
    a(f"  s_movk_i32 s{sT1}, 0x1000")
    a(f"  s_mov_b32 m0, {L_WRAD+4096+128}")
    a("L2_aux_go:")
    a("  s_nop 0")
    a(f"  buffer_load_dwordx4 v{vL16}, s[{sTMP}:{sTMP+3}], s{sT1} offen lds")
    a("  s_mov_b64 exec, -1")
    srd(a, sTMP, 40, C * C * 2)
    a(f"  s_lshl_b32 s{sT1}, s{sWAVE}, 12")
    for i in range(4):
        a(f"  s_add_u32 m0, s{sT1}, {L_WMIX}\n  s_nop 0")
        a(f"  buffer_load_dwordx4 v{vD0 if i % 2 == 0 else vD1}, s[{sTMP}:{sTMP+3}], s{sT1} offen lds")
        if i < 3: a(f"  s_add_u32 s{sT1}, s{sT1}, 1024")
    srd(a, sX, 4, N * 1024)
    def warm(n):
        for k in range(n):
            a(f"  buffer_load_dwordx4 v[{vPF}:{vPF+3}], v{vL16}, s[{sX}:{sX+3}], s{sPF} offen")
            a(f"  s_add_u32 s{sPF}, s{sPF}, {288*1024}")
    warm(PFA)
    srd(a, sWS, 6, WS_USED)
    srd(a, sOUT, 42, N * 1024)
    sFE = sWS
    if not PACK:
        sFE = 4
        if stamps: a("  s_mov_b32 s100, s6\n  s_mov_b32 s101, s7")
        srd(a, sFE, 44, E * 32)
    a(f"  s_mov_b32 s{sKB}, 0\n  s_mov_b32 s{sSTEP}, {2*NR}")
    for r in range(NR):
        a(f"  v_mov_b32 v{pREC+4*r+1}, -1")
    for r in range(48):
        a(f"  v_mov_b32 v{vACC+r}, 0")
    a(f"  s_mov_b32 s{sNLOG}, 0xbfb8aa3b\n  s_mov_b32 s{sNLOG+1}, 0xbfb8aa3b")
    a(f"  s_mov_b32 s{sP1}, 0x05040100\n  s_mov_b32 s{sP2}, 0x07060302")
    a("  s_barrier")
    a(f"  s_waitcnt vmcnt({5 + PFA})")
    stamp(1)
    a(f"  v_lshrrev_b32 v{vLen}, 16, v{vOL}\n  v_and_b32 v{vOL}, 0xffff, v{vOL}")
    a(f"  v_add3_u32 v{vRecOff}, v{vRecOff}, v{vOL}, v{vJ}\n  v_lshlrev_b32 v{vRecOff}, 4, v{vRecOff}")

    def rec_masks():
        a(f"  s_add_u32 s{sT0}, s{sKB}, s{sSTEP}")
        a(f"  v_min_u32 v{vRem}, s{sT0}, v{vLen}\n  v_subrev_u32 v{vRem}, s{sKB}, v{vRem}\n  v_sub_u32 v{vRem}, v{vRem}, v{vJ}")
        a(f"  s_lshl_b32 s{sT0}, s{sKB}, 4\n  s_add_u32 s{sT0}, s{sT0}, {RECS}")
        for r in range(NR):
            a(f"  v_cmp_lt_i32 s[{sM+2*r}:{sM+2*r+1}], {2*r}, v{vRem}")
        a("  s_nop 3")
    def rec_load(r):
        a(f"  s_mov_b64 exec, s[{sM+2*r}:{sM+2*r+1}]")
        a(f"  buffer_load_dwordx4 v[{pREC+4*r}:{pREC+4*r+3}], v{vRecOff}, s[{sWS}:{sWS+3}], s{sT0} offen offset:{32*r}")

    rec_masks()
    for r in range(NR):
        a(f"  s_cmp_eq_u64 s[{sM+2*r}:{sM+2*r+1}], 0\n  s_cbranch_scc1 L2_first_{r}")
        rec_load(r)
    NY = PFB
    for r in range(NR, -1, -1):
        a(f"L2_first_{r}:")
        a("  s_mov_b64 exec, -1")
        warm(PFB)
        a(f"  s_waitcnt vmcnt({r + NY})")
        if r > 0: a("  s_branch L2_stage")
    a("L2_stage:")
    a(f"  v_cmp_lt_u32 vcc, {2*NR}, v{vLen}\n  s_and_saveexec_b64 s[{sSAVE}:{sSAVE+1}], vcc")
    a(f"  s_cbranch_execz L2_nomax")
    a(f"  v_mov_b32 v{vT1}, {L_FLAG+4}\n  ds_max_u32 v{vT1}, v{vLen}")
    a(f"L2_nomax:")
    a(f"  s_mov_b64 exec, s[{sSAVE}:{sSAVE+1}]")
    a(f"  s_waitcnt vmcnt({NY})")
    stamp(2)
    def touch(tag):
        for r in range(NR):
            a(f"  s_cmp_eq_u64 s[{sM+2*r}:{sM+2*r+1}], 0\n  s_cbranch_scc1 L2_touch_done{tag}")
            a(f"  s_mov_b64 exec, s[{sM+2*r}:{sM+2*r+1}]")
            a(f"  buffer_load_dword v{vPF}, v{pREC+4*r+1}, s[{sFE}:{sFE+3}], 0 offen")
        a(f"L2_touch_done{tag}:")
        a("  s_mov_b64 exec, -1")
    TOUCH = opt.get("touch", 0) if not PACK else 0
    if TOUCH == 1: touch(1)
    a(f"  v_mov_b32 v{vT3}, 64")
    for r in range(NR):
        a(f"  s_cmp_eq_u64 s[{sM+2*r}:{sM+2*r+1}], 0\n  s_cbranch_scc1 L2_deg_done")
        a(f"  s_mov_b64 exec, s[{sM+2*r}:{sM+2*r+1}]")
        a(f"  v_and_b32 v{vT0}, 63, v{pREC+4*r}\n  v_lshlrev_b32 v{vT0}, 2, v{vT0}")
        a(f"  ds_add_u32 v{vT0}, v{vT3} offset:{L_DEG}")
    a("L2_deg_done:")
    a("  s_mov_b64 exec, -1\n  s_waitcnt lgkmcnt(0)\n  s_barrier")
    a(f"  v_lshlrev_b32 v{vT0}, 2, v{vLane}\n  s_mul_i32 s{sT0}, s{sWAVE}, 20\n  v_mov_b32 v{vT1}, s{sT0}")
    a(f"  ds_read_b32 v{vT2}, v{vT0} offset:{L_DEG}")
    for j in range(5):
        a(f"  ds_read_b32 v{pKEY+j}, v{vT1} offset:{L_DEG+4*j}")
    a(f"  v_mov_b32 v{vT3}, 0")
    a("  s_waitcnt lgkmcnt(0)")
    for j in range(5):
        a(f"  v_cmp_gt_u32 s[{sW+2*j}:{sW+2*j+1}], v{pKEY+j}, v{vT2}")
    a("  s_nop 1")
    for j in range(5):
        a(f"  v_addc_co_u32 v{vT3}, vcc, 0, v{vT3}, s[{sW+2*j}:{sW+2*j+1}]")
    a(f"  ds_add_u32 v{vT0}, v{vT3} offset:{L_RANK}")
    a("  s_waitcnt lgkmcnt(0)\n  s_barrier")
    a(f"  s_cmp_lg_u32 s{sWAVE}, 0\n  s_cbranch_scc1 L2_pass_keys")
    a(f"  ds_read_b32 v{vT2}, v{vT0} offset:{L_RANK}")
    a(f"  v_cmp_gt_u32 vcc, {NPB}, v{vLane}\n  s_and_saveexec_b64 s[{sSAVE}:{sSAVE+1}], vcc")
    a(f"  s_waitcnt lgkmcnt(0)\n  v_lshlrev_b32 v{vT2}, 2, v{vT2}")
    a(f"  ds_write_b32 v{vT2}, v{vLane} offset:{L_INV}")
    a(f"  s_mov_b64 exec, s[{sSAVE}:{sSAVE+1}]")
    a("  s_branch L2_pass_keys")

    a("L2_pass:")
    rec_masks()
    for r in range(NR):
        a(f"  s_cmp_eq_u64 s[{sM+2*r}:{sM+2*r+1}], 0\n  s_cbranch_scc1 L2_ld_done")
        rec_load(r)
    a("L2_ld_done:")
    a("  s_mov_b64 exec, -1\n  s_waitcnt vmcnt(0)")
    a("L2_pass_keys:")
    for r in range(NR):
        a(f"  s_cmp_eq_u64 s[{sM+2*r}:{sM+2*r+1}], 0\n  s_cbranch_scc1 L2_rk_done")
        a(f"  s_mov_b64 exec, s[{sM+2*r}:{sM+2*r+1}]")
        a(f"  v_and_b32 v{vT0}, 63, v{pREC+4*r}\n  v_lshlrev_b32 v{vT0}, 2, v{vT0}")
        a(f"  ds_read_b32 v{pBASE+r}, v{vT0} offset:{L_RANK}")
    a("L2_rk_done:")
    a(f"  s_mov_b64 exec, -1\n  v_mov_b32 v{vT3}, 1\n  s_waitcnt lgkmcnt(0)")
    for r in range(NR):
        a(f"  s_cmp_eq_u64 s[{sM+2*r}:{sM+2*r+1}], 0\n  s_cbranch_scc1 L2_key_done")
        a(f"  s_mov_b64 exec, s[{sM+2*r}:{sM+2*r+1}]")
        w0 = pREC + 4 * r; rk = pBASE + r
        a(f"  v_bfe_i32 v{vT0}, v{rk}, 3, 1\n  v_xor_b32 v{vT0}, v{vT0}, v{rk}\n  v_and_b32 v{vT0}, 7, v{vT0}")
        a(f"  v_lshrrev_b32 v{vT1}, 18, v{w0}\n  v_lshlrev_b32 v{vT1}, 2, v{vT1}")
        a(f"  v_lshl_add_u32 v{pKEY+r}, v{vT0}, 8, v{vT1}")
        a(f"  ds_add_rtn_u32 v{pRANK+r}, v{pKEY+r}, v{vT3} offset:{L_CNT}")
        a(f"  v_and_b32 v{w0}, 0xffffffc0, v{w0}\n  v_and_or_b32 v{w0}, v{rk}, 56, v{w0}")
    a("L2_key_done:")
    a("  s_mov_b64 exec, -1")
    if TOUCH == 2: touch(2)
    a("  s_waitcnt lgkmcnt(0)\n  s_barrier")
    if TOUCH == 3: touch(3)
    a(f"  s_lshl_b32 s{sT0}, s{sWAVE}, 8\n  v_lshl_add_u32 v{vT0}, v{vLane}, 2, s{sT0}")
    a(f"  ds_read_b32 v{vT1}, v{vT0} offset:{L_CNT}\n  s_waitcnt lgkmcnt(0)\n  v_mov_b32 v{vT2}, v{vT1}")
    wave_scan(a, vT2)
    a(f"  v_sub_u32 v{vT1}, v{vT2}, v{vT1}")
    a(f"  v_readlane_b32 s{sN}, v{vT2}, 63")
    a(f"  ds_write_b32 v{vT0}, v{vT1} offset:{L_CNT}")
    a(f"  s_cmp_gt_u32 s{sN}, {CAPFILL}\n  s_cbranch_scc0 L2_noovf")
    a(f"  v_mov_b32 v{vT0}, {L_FLAG}\n  v_mov_b32 v{vT1}, 1\n  ds_write_b32 v{vT0}, v{vT1}")
    a("  s_branch L2_padded")
    a("L2_noovf:")
    a(f"  s_lshl_b32 s{sT0}, s{sN}, 4\n  s_add_u32 s{sT0}, s{sT0}, s{sLISTW}\n  v_add_u32 v{vT0}, s{sT0}, v{vL16}")
    a(f"  v_mov_b32 v{vREC}, {DUMMY_W0}\n  v_mov_b32 v{vREC+1}, {DUMMY_W1}\n  v_mov_b32 v{vREC+2}, 0\n  v_mov_b32 v{vREC+3}, 0")
    a(f"  s_mov_b32 exec_hi, 0\n  ds_write_b128 v{vT0}, v[{vREC}:{vREC+3}]\n  s_mov_b64 exec, -1")
    a("L2_padded:")
    a("  s_waitcnt lgkmcnt(0)\n  s_barrier")
    if TOUCH == 4: touch(4)
    a(f"  v_mov_b32 v{vT0}, {L_FLAG}\n  ds_read_b64 v[{vKPn}:{vKPn+1}], v{vT0}")
    for r in range(NR):
        a(f"  s_cmp_eq_u64 s[{sM+2*r}:{sM+2*r+1}], 0\n  s_cbranch_scc1 L2_base_done")
        a(f"  s_mov_b64 exec, s[{sM+2*r}:{sM+2*r+1}]")
        a(f"  ds_read_b32 v{pBASE+r}, v{pKEY+r} offset:{L_CNT}")
    a("L2_base_done:")
    a("  s_mov_b64 exec, -1\n  s_waitcnt lgkmcnt(0)")
    a(f"  v_readfirstlane_b32 s{sFLAG}, v{vKPn}\n  v_readfirstlane_b32 s{sMAXL}, v{vKPn+1}")
    a(f"  s_cmp_lg_u32 s{sFLAG}, 0\n  s_cbranch_scc1 L2_overflow")
    for r in range(NR):
        a(f"  s_cmp_eq_u64 s[{sM+2*r}:{sM+2*r+1}], 0\n  s_cbranch_scc1 L2_scat_done")
        a(f"  s_mov_b64 exec, s[{sM+2*r}:{sM+2*r+1}]")
        w0 = pREC + 4 * r
        a(f"  v_lshrrev_b32 v{vT0}, 8, v{pKEY+r}\n  v_mul_u32_u24 v{vT0}, {CAPW*16}, v{vT0}")
        a(f"  v_add_u32 v{vT1}, v{pBASE+r}, v{pRANK+r}\n  v_lshl_add_u32 v{vT0}, v{vT1}, 4, v{vT0}")
        a(f"  ds_write_b128 v{vT0}, v[{w0}:{w0+3}] offset:{L_LIST}")
    a("L2_scat_done:")
    a("  s_mov_b64 exec, -1\n  s_waitcnt lgkmcnt(0)\n  s_barrier")
    stamp(3)

    def kcompute(dst, tmp):
        for i in range(4): a(f"  v_dot2_f32_bf16 v{tmp+i}, v{vREC+3}, v{vCG+2*i+1}, 0")
        for i in range(4): a(f"  v_dot2_f32_bf16 v{tmp+i}, v{vREC+2}, v{vCG+2*i}, v{tmp+i}")
        a("  s_nop 2")
        a(f"  v_cvt_pk_bf16_f32 v{dst}, v{tmp}, v{tmp+1}\n  v_cvt_pk_bf16_f32 v{dst+1}, v{tmp+2}, v{tmp+3}")
    def bigm(i, zb):
        t, half = i >> 1, i & 1
        z = vZZ + 32 * zb + 16 * t
        c = "0" if half == 0 else f"v[{z}:{z+15}]"
        A_ = vA + 4 * half; B_ = vWB + (t * 2 + half) * 4
        return f"  v_mfma_f32_32x32x16_bf16 v[{z}:{z+15}], v[{A_}:{A_+3}], v[{B_}:{B_+3}], {c}"
    def aread():
        a(f"  ds_read_b128 v[{vA}:{vA+3}], v{vA1A}\n  ds_read_b128 v[{vA+4}:{vA+7}], v{vA2A}")
        a(f"  v_add_u32 v{vA1A}, v{vA1A}, v{vInc1}\n  v_add_u32 v{vA2A}, v{vA2A}, v{vInc2}")
    def rowload(slot, so):
        a(f"  buffer_load_dwordx4 v[{vROW+4*slot}:{vROW+4*slot+3}], v{vL16}, s[{sX}:{sX+3}], s{so} offen{' nt' if opt.get('xnt') else ''}")
    def rowoff(dst, src):
        if opt.get("nomem"): a(f"  s_and_b32 s{dst}, s{src}, 0x3c00")
        else: a(f"  s_andn2_b32 s{dst}, s{src}, 63")

    if opt.get("prio") == 1:
        a(f"  s_cmp_ge_u32 s{sWAVE}, 4\n  s_cbranch_scc0 L2_noprio\n  s_setprio 1\nL2_noprio:")
    a(f"  s_cmp_eq_u32 s{sN}, 0\n  s_cbranch_scc1 L2_loop_exit")
    a(f"  s_add_u32 s{sG}, s{sN}, 3\n  s_lshr_b32 s{sG}, s{sG}, 2")
    a(f"  v_lshrrev_b32 v{vT0}, 2, v{vLane}\n  v_lshlrev_b32 v{vT0}, 4, v{vT0}\n  v_add_u32 v{vRecA}, s{sLISTW}, v{vT0}")
    a(f"  ds_read_b128 v[{vREC}:{vREC+3}], v{vRecA}")
    a(f"  v_lshrrev_b32 v{vT0}, 1, v{vLane}\n  v_lshlrev_b32 v{vT0}, 4, v{vT0}\n  v_add_u32 v{vT0}, s{sLISTW}, v{vT0}")
    for i in range(4):
        a(f"  ds_read_b32 v{vT+i}, v{vT0} offset:{i*512+4}")
    a(f"  v_and_b32 v{vT1}, 1, v{vLane}\n  v_lshlrev_b32 v{vT1}, 4, v{vT1}")
    a(f"  v_bfe_u32 v{vT2}, v{vLane}, 3, 2\n  v_lshlrev_b32 v{vT2}, 2, v{vT2}\n  v_and_b32 v{vT3}, 3, v{vLane}\n  v_add_u32 v{vT2}, v{vT2}, v{vT3}")
    a(f"  v_lshlrev_b32 v{vT2}, 5, v{vT2}\n  v_lshrrev_b32 v{vT3}, 5, v{vLane}\n  v_lshl_add_u32 v{vT2}, v{vT3}, 4, v{vT2}\n  v_add_u32 v{vT2}, s{sEFLW}, v{vT2}")
    a(f"  v_and_b32 v{vT3}, 4, v{vLane}\n  v_cmp_eq_u32 vcc, 0, v{vT3}")
    a(f"  v_mov_b32 v{vT3}, {L_ZERO}\n  v_mov_b32 v{vInc2}, 512\n  v_mov_b32 v{vW0}, 0")
    a(f"  v_cndmask_b32 v{vA1A}, v{vT3}, v{vT2}, vcc\n  v_cndmask_b32 v{vA2A}, v{vT2}, v{vT3}, vcc")
    a(f"  v_cndmask_b32 v{vInc1}, v{vW0}, v{vInc2}, vcc\n  v_cndmask_b32 v{vInc2}, v{vInc2}, v{vW0}, vcc")
    a(f"  s_mov_b32 s{sT1}, {EFS if PACK else 0}\n  s_mov_b32 m0, s{sEFLW}")
    a(f"  v_lshrrev_b32 v{vT2}, 1, v{vLane}\n  v_mov_b32 v{vT3}, {DUMMY_W1}")
    a("  s_waitcnt lgkmcnt(0)")
    def efdma(i):
        a(f"  v_add_u32 v{vT+4}, {32*i}, v{vT2}\n  v_cmp_gt_u32 vcc, s{sN}, v{vT+4}")
        a(f"  v_add_u32 v{vT+i}, v{vT+i}, v{vT1}")
        a(f"  s_add_u32 m0, s{sEFLW}, {1024*i}")
        a(f"  v_cndmask_b32 v{vT+i}, v{vT3}, v{vT+i}, vcc")
        a(f"  buffer_load_dwordx4 v{vT+i}, s[{sFE}:{sFE+3}], s{sT1} offen lds")
    a(f"  s_cmp_le_u32 s{sN}, 128\n  s_cbranch_scc1 L2_dma_small")
    a(f"  s_movk_i32 s{sT0}, 128")
    a("L2_dma_more:")
    a(f"  s_lshl_b32 s{sO}, s{sT0}, 4\n  v_add_u32 v{vT+5}, s{sO}, v{vT0}\n  ds_read_b32 v{vT+5}, v{vT+5} offset:4")
    a(f"  s_lshl_b32 s{sO}, s{sT0}, 5\n  s_add_u32 m0, s{sEFLW}, s{sO}\n  s_waitcnt lgkmcnt(0)")
    a(f"  v_add_u32 v{vT+5}, v{vT+5}, v{vT1}")
    a(f"  buffer_load_dwordx4 v{vT+5}, s[{sFE}:{sFE+3}], s{sT1} offen lds")
    a(f"  s_add_u32 s{sT0}, s{sT0}, 32\n  s_cmp_lt_u32 s{sT0}, s{sN}\n  s_cbranch_scc1 L2_dma_more")
    a("L2_dma_small:")
    efdma(0)
    for j in range(8):
        a(f"  v_readlane_b32 s{sW+j}, v{vREC}, {4*j}")
        rowoff(sO, sW + j)
        rowload(j, sO)
    for i in range(1, 4): efdma(i)
    a(f"  v_mov_b32 v{vW0}, v{vREC}")
    a(f"  v_and_b32 v{vT2}, 3, v{vLane}\n  v_lshlrev_b32 v{vT2}, 1, v{vT2}\n  v_add_u32 v{vT2}, {L_WRAD}, v{vT2}")
    for i in range(4):
        for f in range(4):
            a(f"  ds_read_u16 v{vZZ+16+4*i+f}, v{vT2} offset:{4096+(i*16+f*4)*2}")
    a("  s_waitcnt lgkmcnt(0)")
    for i in range(4):
        a(f"  v_lshl_or_b32 v{vCG+2*i}, v{vZZ+16+4*i+1}, 16, v{vZZ+16+4*i}")
        a(f"  v_lshl_or_b32 v{vCG+2*i+1}, v{vZZ+16+4*i+3}, 16, v{vZZ+16+4*i+2}")
    a(f"  v_lshrrev_b32 v{vT1}, 5, v{vLane}\n  v_lshlrev_b32 v{vT1}, 11, v{vT1}\n  v_and_b32 v{vT2}, 31, v{vLane}\n  v_lshl_add_u32 v{vT1}, v{vT2}, 2, v{vT1}\n  v_add_u32 v{vT1}, {L_WRAD}, v{vT1}")
    for half in range(2):
        for j in range(8):
            a(f"  ds_read_b32 v{pW+8*half+j}, v{vT1} offset:{j*256+half*128}")
    a("  s_waitcnt lgkmcnt(0)")
    for t in range(2):
        for half in range(2):
            for jj in range(4):
                a(f"  v_perm_b32 v{vWB+(t*2+half)*4+jj}, v{pW+8*half+2*jj+1}, v{pW+8*half+2*jj}, s{sP1 if t == 0 else sP2}")
    kcompute(vKP, vTP)
    a(f"  v_add_u32 v{vRecA}, 256, v{vRecA}")
    a("  s_waitcnt vmcnt(11)")
    aread()
    a("  s_waitcnt lgkmcnt(0)")
    for i in range(4): a(bigm(i, 0))
    a("  s_nop 7")
    aread()
    a("  s_nop 7")
    def inter(x, y):
        for i in range(max(len(x), len(y))):
            if i < len(x): a(x[i])
            if i < len(y): a(y[i])
    def batch(cb, first, tail):
        for gi in range(4):
            z0 = vZZ + 32 * cb + 4 * gi; z1 = z0 + 16
            zp = [z0, z0 + 2, z1, z1 + 2]
            nset = (gi + 2) % 4
            if opt.get("prio") == 3:
                a(f"  s_cmp_ge_u32 s{sWAVE}, 4\n  s_cbranch_scc{1 if gi % 2 == 0 else 0} L2_pl_{cb}_{gi}_{int(first)}\n  s_setprio 1\n  s_branch L2_ph_{cb}_{gi}_{int(first)}\nL2_pl_{cb}_{gi}_{int(first)}:\n  s_setprio 0\nL2_ph_{cb}_{gi}_{int(first)}:")
            if opt.get("prio") == 4 and gi == 0:
                a(f"  s_cmp_ge_u32 s{sWAVE}, 4\n  s_cbranch_scc{1 if cb == 0 else 0} L2_pl_{cb}_{gi}_{int(first)}\n  s_setprio 1\n  s_branch L2_ph_{cb}_{gi}_{int(first)}\nL2_pl_{cb}_{gi}_{int(first)}:\n  s_setprio 0\nL2_ph_{cb}_{gi}_{int(first)}:")
            if gi == 0:
                a("  s_waitcnt lgkmcnt(0)")
                a(f"  ds_read_b128 v[{vREC}:{vREC+3}], v{vRecA}")
            if gi == 1:
                a("  s_waitcnt lgkmcnt(0)")
            sm = [f"  v_pk_mul_f32 v[{vT+2*p}:{vT+2*p+1}], v[{zp[p]}:{zp[p]+1}], s[{sNLOG}:{sNLOG+1}]" for p in range(4)]
            ex = [f"  v_exp_f32 v{vT+i}, v{vT+i}" for i in range(8)]
            sa = [f"  v_pk_add_f32 v[{vT+2*p}:{vT+2*p+1}], v[{vT+2*p}:{vT+2*p+1}], 1.0 op_sel_hi:[1,0]" for p in range(4)]
            rc = [f"  v_rcp_f32 v{vT+i}, v{vT+i}" for i in range(8)]
            sr = [f"  v_pk_mul_f32 v[{vRR+2*p}:{vRR+2*p+1}], v[{zp[p]}:{zp[p]+1}], v[{vT+2*p}:{vT+2*p+1}]" for p in range(4)]
            rl = []
            for q in range(4):
                src, ln = (vW0, 4 * (4 * (gi + 2) + q)) if gi < 2 else (vREC, 4 * (4 * (gi - 2) + q))
                rl.append(f"  v_readlane_b32 s{sW+4*nset+q}, v{src}, {ln}")
            tp = []
            for r in range(4):
                sl = (gi % 2) * 4 + r
                for t in range(2):
                    tp.append(f"  v_mfma_f32_4x4x4_16b_bf16 v[{vTP+8*r+4*t}:{vTP+8*r+4*t+3}], v[{vKP}:{vKP+1}], v[{vROW+4*sl+2*t}:{vROW+4*sl+2*t+1}], 0 cbsz:4 abid:{4*gi+r}")
            for x in sm: a(x)
            inter(ex, [bigm(gi, 1 - cb)])
            for x in sa: a(x)
            for x in rl: a(x)
            if gi == 1: kcompute(vKPn, vTP)
            a(f"  s_waitcnt vmcnt({7 if (first and gi < 2) else 4})")
            if gi == 3: aread()
            inter(tp, rc)
            for r in range(4): rowoff(sO + r, sW + 4 * nset + r)
            for r in range(4): rowload((gi % 2) * 4 + r, sO + r)
            for x in sr: a(x)
            for r in range(4):
                a(f"  s_set_gpr_idx_on s{sW+4*gi+r}, gpr_idx(SRC2,DST)" if r == 0 else f"  s_set_gpr_idx_idx s{sW+4*gi+r}")
                for t in range(2):
                    rr = vRR + 4 * t + (r & ~1)
                    sel = "op_sel:[0,1,0] op_sel_hi:[1,1,1]" if r & 1 else "op_sel:[0,0,0] op_sel_hi:[1,0,1]"
                    for h in range(2):
                        d = vACC + 4 * t + 2 * h; tpp = vTP + 8 * r + 4 * t + 2 * h
                        a(f"  v_pk_fma_f32 v[{d}:{d+1}], v[{tpp}:{tpp+1}], v[{rr}:{rr+1}], v[{d}:{d+1}] {sel}")
            a("  s_set_gpr_idx_off")
            if gi == 3:
                a(f"  v_mov_b32 v{vKP}, v{vKPn}\n  v_mov_b32 v{vKP+1}, v{vKPn+1}\n  v_mov_b32 v{vW0}, v{vREC}")
                a(f"  v_add_u32 v{vRecA}, 256, v{vRecA}")
            a(f"  s_sub_u32 s{sG}, s{sG}, 1\n  s_cmp_eq_u32 s{sG}, 0")
            if gi == 3 and tail: a(f"  s_cbranch_scc0 {tail}")
            else: a("  s_cbranch_scc1 L2_loop_exit")
    batch(0, True, None)
    a("L2_batch1:")
    batch(1, False, None)
    batch(0, False, "L2_batch1")
    a("L2_loop_exit:")
    a("  s_waitcnt vmcnt(0) lgkmcnt(0)")
    stamp(4)
    a(f"  s_add_u32 s{sKB}, s{sKB}, s{sSTEP}\n  s_cmp_lt_u32 s{sKB}, s{sMAXL}\n  s_cbranch_scc0 L2_epilogue")
    a("L2_rezero:")
    a("  s_barrier")
    a(f"  v_lshlrev_b32 v{vT1}, 2, v0\n  v_mov_b32 v{vT2}, 0\n  ds_write_b32 v{vT1}, v{vT2} offset:{L_CNT}")
    a(f"  v_mov_b32 v{vT1}, {L_FLAG}\n  ds_write_b32 v{vT1}, v{vT2}")
    a(f"  v_mov_b32 v{vT1}, {L_FLAG+4}\n  ds_max_u32 v{vT1}, v{vLen}")
    a("  s_waitcnt lgkmcnt(0)\n  s_barrier\n  s_branch L2_pass")
    a("L2_overflow:")
    a(f"  s_mov_b32 s{sSTEP}, 1\n  s_branch L2_rezero")

    a("L2_epilogue:")
    eA = vTP; eBb = [vROW, vROW + 16]; eD = vACC
    vAa, vAb, vBa, vBx, vOut = vRecA, vA1A, vA2A, vW0, vInc1
    a(f"  v_add_u32 v{vT0}, s{sEFLW}, v{vL16}")
    for s in range(5):
        b = vACC + 8 * s; p = vROW + 4 * (s % 2)
        for i in range(4): a(f"  v_cvt_pk_bf16_f32 v{p+i}, v{b+2*i}, v{b+2*i+1}")
        a(f"  ds_write_b128 v{vT0}, v[{p}:{p+3}] offset:{s*AGG_STRIDE}")
        a("  s_nop 1")
    a(f"  v_lshrrev_b32 v{vT1}, 4, v{vLane}\n  v_bfe_u32 v{vT2}, v{vLane}, 2, 2\n  v_lshl_add_u32 v{vT2}, v{vT1}, 2, v{vT2}\n  v_and_b32 v{vT3}, 3, v{vLane}")
    a(f"  v_lshlrev_b32 v{vAa}, 3, v{vT2}\n  v_add_u32 v{vAa}, s{sEFLW}, v{vAa}")
    a(f"  v_mul_u32_u24 v{vAb}, {AGG_STRIDE}, v{vT3}\n  v_add_u32 v{vAb}, v{vAb}, v{vAa}")
    a(f"  v_and_b32 v{vBx}, 7, v{vT2}\n  v_lshlrev_b32 v{vBx}, 1, v{vBx}")
    a(f"  v_lshrrev_b32 v{vBa}, 1, v{vT3}\n  v_xor_b32 v{vBa}, v{vBa}, v{vBx}\n  v_lshlrev_b32 v{vBa}, 4, v{vBa}")
    a(f"  v_and_b32 v{vBx}, 1, v{vT3}\n  v_lshl_add_u32 v{vBa}, v{vBx}, 3, v{vBa}")
    a(f"  v_lshl_add_u32 v{vBa}, v{vT2}, 8, v{vBa}\n  v_add_u32 v{vBa}, {L_WMIX}, v{vBa}")
    a("  s_waitcnt lgkmcnt(0)")
    for tile in range(2):
        for s in range(4):
            for h in range(2):
                d = eA + tile * 16 + s * 4 + h * 2
                if tile == 0: a(f"  ds_read_b64_tr_b16 v[{d}:{d+1}], v{vAb} offset:{(32*s+16*h)*8}")
                else: a(f"  ds_read_b64_tr_b16 v[{d}:{d+1}], v{vAa} offset:{4*AGG_STRIDE+(32*s+16*h)*8}")
    vOut1 = vInc2
    a(f"  v_and_b32 v{vOut}, 1, v{vT1}\n  v_mul_u32_u24 v{vOut}, 7, v{vOut}\n  v_xor_b32 v{vOut}, s{sWAVE}, v{vOut}\n  v_lshl_add_u32 v{vOut}, v{vT1}, 3, v{vOut}")
    a(f"  v_lshlrev_b32 v{vOut}, 2, v{vOut}\n  ds_read_b32 v{vOut}, v{vOut} offset:{L_INV}")
    a(f"  s_lshl_b32 s{sT1}, s{sWAVE}, 2\n  v_mov_b32 v{vOut1}, s{sT1}\n  ds_read_b32 v{vOut1}, v{vOut1} offset:{L_INV+128}")
    a(f"  s_mul_i32 s{sT0}, s2, 625\n  s_add_u32 s{sT1}, s{sT0}, {625+15}\n  s_add_u32 s{sT0}, s{sT0}, 15")
    a(f"  s_lshr_b32 s{sT0}, s{sT0}, 4\n  s_lshr_b32 s{sT1}, s{sT1}, 4\n  s_sub_u32 s{sT1}, s{sT1}, s{sT0}\n  s_lshl_b32 s{sT0}, s{sT0}, 10")
    a(f"  v_and_b32 v{vT2}, 15, v{vLane}\n  v_lshlrev_b32 v{vT2}, 3, v{vT2}")
    a("  s_waitcnt lgkmcnt(0)")
    a(f"  v_cmp_gt_u32 s[{sM}:{sM+1}], s{sT1}, v{vOut}\n  v_cmp_gt_u32 s[{sM+2}:{sM+3}], s{sT1}, v{vOut1}")
    a(f"  v_lshl_add_u32 v{vOut}, v{vOut}, 10, v{vT2}\n  v_lshl_add_u32 v{vOut1}, v{vOut1}, 10, v{vT2}")
    a(f"  s_and_b32 s{sM+2}, s{sM+2}, 0xffff\n  s_mov_b32 s{sM+3}, 0")
    def bload(ct):
        a(f"  v_xor_b32 v{vBx}, {ct*32}, v{vBa}")
        for s in range(4):
            for h in range(2):
                d = eBb[ct % 2] + s * 4 + h * 2
                a(f"  ds_read_b64_tr_b16 v[{d}:{d+1}], v{vBx} offset:{(32*s+16*h)*256}")
    def store_ct(ct):
        for tile in range(2):
            d = eD + (ct % 2) * 8 + tile * 4; p = vT + 2 * tile
            a(f"  v_cvt_pk_bf16_f32 v{p}, v{d}, v{d+1}\n  v_cvt_pk_bf16_f32 v{p+1}, v{d+2}, v{d+3}")
        a(f"  s_mov_b64 exec, s[{sM}:{sM+1}]")
        a(f"  buffer_store_dwordx2 v[{vT}:{vT+1}], v{vOut}, s[{sOUT}:{sOUT+3}], s{sT0} offen offset:{ct*128}")
        a(f"  s_mov_b64 exec, s[{sM+2}:{sM+3}]")
        a(f"  buffer_store_dwordx2 v[{vT+2}:{vT+3}], v{vOut1}, s[{sOUT}:{sOUT+3}], s{sT0} offen offset:{ct*128}")
        a("  s_mov_b64 exec, -1")
    bload(0)
    for ct in range(8):
        if ct + 1 < 8:
            bload(ct + 1)
            a("  s_waitcnt lgkmcnt(8)")
        else:
            a("  s_waitcnt lgkmcnt(0)")
        for tile in range(2):
            d = eD + (ct % 2) * 8 + tile * 4
            for s in range(4):
                c = "0" if s == 0 else f"v[{d}:{d+3}]"
                A_ = eA + tile * 16 + s * 4; B_ = eBb[ct % 2] + s * 4
                a(f"  v_mfma_f32_16x16x32_bf16 v[{d}:{d+3}], v[{A_}:{A_+3}], v[{B_}:{B_+3}], {c}")
        if ct > 0: store_ct(ct - 1)
    a("  s_nop 7")
    store_ct(7)
    if stamps:
        stamp(5)
        a("  s_waitcnt lgkmcnt(0)")
        ws0, ws1 = (6, 7) if PACK else (100, 101)
        a(f"  s_mov_b32 s{sOFFSRD}, s{ws0}\n  s_mov_b32 s{sOFFSRD+1}, s{ws1}\n  s_mov_b32 s{sOFFSRD+2}, 0x10000000\n  s_mov_b32 s{sOFFSRD+3}, 0x20000")
        a(f"  s_lshl_b32 s{sT0}, s2, 3\n  s_add_u32 s{sT0}, s{sT0}, s{sWAVE}\n  s_mul_i32 s{sT0}, s{sT0}, 64\n  s_add_u32 s{sT0}, s{sT0}, {STAMP_OFF}")
        a(f"  v_mov_b32 v{vT+2}, 0")
        for i in range(6):
            a(f"  v_mov_b32 v{vT+0}, s{sST+2*i}\n  v_mov_b32 v{vT+1}, s{sST+2*i+1}")
            a(f"  buffer_store_dwordx2 v[{vT}:{vT+1}], v{vT+2}, s[{sOFFSRD}:{sOFFSRD+3}], s{sT0} offen offset:{8*i}")
            a("  s_waitcnt vmcnt(0)")
    a("L2_end:")
    a("  s_endpgm")
    return NV, NS

def build(opt):
    a = A()
    a(f"; @launch kernel={K1} grid=({NCH},1,1) block=({CH},1,1) lds={max(K1_LDS, opt.get('lds1', 0))}")
    a(f"; @launch kernel={K2} grid=({NB},1,1) block=(512,1,1) lds={LDS2}")
    a('.amdgcn_target "amdgcn-amd-amdhsa--gfx950"')
    a(".text")
    gen_k1(a, opt)
    nv, ns = gen_k2(a, opt)
    a('.section .rodata,"a"\n.p2align 6')
    a(kd(K1, 48, 64))
    a(".p2align 6")
    a(kd(K2, nv, ns))
    return a.text(), nv

if __name__ == "__main__":
    out = sys.argv[1]
    opt = {}
    for x in sys.argv[2:]:
        k, _, val = x.partition("=")
        opt[k] = int(val) if val else True
    t, nv = build(opt)
    open(out, "w").write(t)
    print("wrote", out, "LDS2 =", LDS2, "NV =", nv)
```

```python
import sys

N, E, C = 10000, 160000, 128
NB, NPB = 256, 40
NCH, CH = 250, 640
OFFS = 0
RECS = 0x40000
EFS = RECS + E * 16
WS_USED = EFS + E * 32
STAMP_OFF, STAMP1_OFF = 0x4000000, 0x4100000
K1 = "bin_edges_kernel"
K2 = "gather_scatter__tensor_product_equiv_tfn__graph_kernel"

class A:
    def __init__(self): self.L = []
    def __call__(self, s):
        for line in s.strip("\n").split("\n"): self.L.append(line)
    def text(self): return "\n".join(self.L) + "\n"

class V:
    def __init__(self, start=1): self.n = start
    def get(self, cnt=1, align=1):
        self.n = (self.n + align - 1) // align * align
        r = self.n; self.n += cnt
        return r

def srd(a, r, lo, size):
    a(f"  s_mov_b32 s{r}, s{lo}\n  s_mov_b32 s{r+1}, s{lo+1}\n  s_mov_b32 s{r+2}, {size}\n  s_mov_b32 s{r+3}, 0x20000")

def wave_scan(a, v, op="v_add_u32"):
    for ctl in ("row_shr:1", "row_shr:2", "row_shr:4", "row_shr:8"):
        a(f"  s_nop 1\n  {op}_dpp v{v}, v{v}, v{v} {ctl} row_mask:0xf bank_mask:0xf bound_ctrl:0")
    a(f"  s_nop 1\n  {op}_dpp v{v}, v{v}, v{v} row_bcast:15 row_mask:0xa bank_mask:0xf")
    a(f"  s_nop 1\n  {op}_dpp v{v}, v{v}, v{v} row_bcast:31 row_mask:0xc bank_mask:0xf")

def hwslot(a, dst, tmp):
    a(f"  s_getreg_b32 s{dst}, hwreg(HW_REG_HW_ID, 13, 2)")
    a(f"  s_getreg_b32 s{tmp}, hwreg(HW_REG_HW_ID, 8, 4)")
    a(f"  s_mul_i32 s{dst}, s{dst}, 9\n  s_add_u32 s{dst}, s{dst}, s{tmp}")

def kd(name, nv, ns):
    return f""".amdhsa_kernel {name}
  .amdhsa_next_free_vgpr {nv}
  .amdhsa_next_free_sgpr {ns}
  .amdhsa_accum_offset {min((nv + 3) // 4 * 4, 256)}
  .amdhsa_group_segment_fixed_size 0
  .amdhsa_kernarg_size 88
  .amdhsa_user_sgpr_count 2
  .amdhsa_user_sgpr_kernarg_segment_ptr 1
  .amdhsa_system_sgpr_workgroup_id_x 1
  .amdhsa_float_denorm_mode_32 3
.end_amdhsa_kernel"""

K1_CNT, K1_BASE, K1_INV, K1_HDR, K1_EF = 0, 1024, 2048, 4608, 14848
K1_LDS = K1_EF + CH * 32

def gen_k1(a, opt):
    P1 = opt.get("p1", 0)
    stamps = opt.get("stamps", False)
    def stamp(i):
        if stamps: a(f"  s_memrealtime s[{48+2*i}:{48+2*i+1}]")
    sSRC, sDST, sY, sWS, sX, sEF = 16, 20, 24, 28, 36, 44
    a(f".globl {K1}\n.p2align 8\n.type {K1},@function\n{K1}:")
    a(f"  s_cmp_ge_u32 s2, {NCH}\n  s_cbranch_scc1 L1_end")
    stamp(0)
    a("  s_load_dwordx4 s[4:7], s[0:1], 8")
    a("  s_load_dwordx4 s[8:11], s[0:1], 24")
    a("  s_load_dwordx2 s[40:41], s[0:1], 80")
    a("  s_load_dwordx2 s[32:33], s[0:1], 0")
    a("  v_lshlrev_b32 v1, 2, v0\n  v_mov_b32 v2, 0\n  v_lshrrev_b32 v21, 6, v0")
    a("  v_cmp_gt_u32 vcc, 256, v0\n  s_and_saveexec_b64 s[12:13], vcc")
    a(f"  ds_write_b32 v1, v2 offset:{K1_CNT}")
    a("  s_mov_b64 exec, s[12:13]")
    a(f"  s_mul_i32 s14, s2, {CH}")
    a("  v_add_u32 v3, s14, v0")
    a("  v_readfirstlane_b32 s15, v21")
    a("  v_lshlrev_b32 v4, 2, v3\n  v_lshlrev_b32 v5, 3, v3")
    a("  v_and_b32 v22, 63, v0\n  v_lshlrev_b32 v22, 4, v22")
    a("  s_waitcnt lgkmcnt(0)")
    srd(a, sDST, 6, E * 4)
    a(f"  buffer_load_dword v6, v4, s[{sDST}:{sDST+3}], 0 offen")
    srd(a, sSRC, 4, E * 4)
    a(f"  buffer_load_dword v7, v4, s[{sSRC}:{sSRC+3}], 0 offen")
    srd(a, sY, 8, E * 8)
    a(f"  buffer_load_dwordx2 v[10:11], v5, s[{sY}:{sY+3}], 0 offen")
    srd(a, sWS, 40, WS_USED)
    srd(a, sEF, 10, E * 32)
    srd(a, sX, 32, N * 1024)
    a(f"  s_lshl_b32 s12, s15, 11\n  s_mul_i32 s13, s2, {CH*32}\n  s_add_u32 s13, s13, s12")
    def efdma():
        for i in range(2):
            a(f"  s_add_u32 m0, s12, {K1_EF + 1024*i}")
            a("  s_nop 0")
            a(f"  buffer_load_dwordx4 v22, s[{sEF}:{sEF+3}], s13 offen offset:0 lds")
            if i == 0: a("  s_add_u32 s13, s13, 1024")
    PACK = opt.get("pack", 1)
    if not PACK:
        def efdma(): pass
    if not opt.get("k1late"): efdma()
    if P1:
        hwslot(a, 34, 35)
        a(f"  s_mul_i32 s34, s34, 10\n  s_add_u32 s34, s34, s15\n  s_add_u32 s34, s34, {360*(P1-1)}\n  s_lshl_b32 s34, s34, 10")
    PT = 1 if opt.get("pretouch") else 0
    if PT:
        a("  s_mov_b64 exec, 1")
        a(f"  buffer_load_dword v44, v22, s[{sX}:{sX+3}], s34 offen")
        a("  s_mov_b64 exec, -1")
    if opt.get("codepf"):
        nk = opt.get("codepf")
        a(f"  s_lshr_b32 s34, s2, 3\n  s_cmp_ge_u32 s34, {nk}\n  s_cbranch_scc1 L1_nocode\n  s_cmp_lg_u32 s15, 9\n  s_cbranch_scc1 L1_nocode")
        a("  s_getpc_b64 s[62:63]")
        a("L1_pc:")
        a(f"  s_add_u32 s62, s62, {K2}-L1_pc\n  s_addc_u32 s63, s63, 0")
        a("  s_lshl_b32 s34, s34, 10\n  v_add_u32 v23, s34, v22")
        a("  global_load_dwordx4 v[44:47], v23, s[62:63]")
        a("L1_nocode:")
    TLBW = opt.get("tlbw", 0)
    if TLBW:
        a("  s_load_dwordx2 s[62:63], s[0:1], 64")
        a("  s_lshr_b32 s34, s2, 3\n  s_mul_i32 s34, s34, 5\n  v_and_b32 v23, 63, v0\n  v_add_u32 v23, s34, v23\n  v_lshlrev_b32 v23, 16, v23")
        a("  s_waitcnt lgkmcnt(0)")
        srd(a, 56, 62, N * 1024)
        a("  s_cmp_lg_u32 s15, 1\n  s_cbranch_scc1 L1_notlb")
        a("  s_mov_b64 exec, 0x1f")
        a(f"  buffer_load_dword v44, v23, s[{sX}:{sX+3}], 0 offen")
        a(f"  buffer_load_dword v45, v23, s[{sEF}:{sEF+3}], 0 offen")
        a(f"  buffer_load_dword v46, v23, s[56:59], 0 offen")
        a("  s_mov_b64 exec, -1")
        a("  s_waitcnt vmcnt(0)")
        a("L1_notlb:")
    a("  s_barrier")
    nd = 0 if (opt.get("k1late") or not PACK) else 2
    ND = 2 if PACK else 0
    a(f"  s_waitcnt vmcnt({2+nd+PT})")
    stamp(1)
    if opt.get("k1late"): efdma()
    PFPOS = opt.get("pfpos", 0)
    def pf1():
        for k in range(P1):
            a(f"  buffer_load_dwordx4 v[40:43], v22, s[{sX}:{sX+3}], s34 offen")
            if k + 1 < P1: a(f"  s_sub_u32 s34, s34, {360*1024}")
    if PFPOS == 0: pf1()
    P1a = P1 if PFPOS == 0 else 0
    a("  s_mov_b32 s35, 109951163\n  v_mul_hi_u32 v12, s35, v6\n  v_min_u32 v12, 255, v12")
    a("  v_and_b32 v16, 7, v12\n  v_lshlrev_b32 v16, 7, v16")
    a("  v_lshrrev_b32 v17, 3, v12\n  v_lshl_add_u32 v16, v17, 2, v16")
    a("  v_mov_b32 v17, 1")
    a(f"  ds_add_rtn_u32 v18, v16, v17 offset:{K1_CNT}")
    a("  v_mul_u32_u24 v13, 625, v12\n  v_add_u32 v13, 15, v13\n  v_lshrrev_b32 v13, 4, v13\n  v_sub_u32 v13, v6, v13")
    a("  v_mov_b32 v14, v13")
    a(f"  s_waitcnt vmcnt({1 + ND + P1a + PT})")
    a("  v_lshl_or_b32 v8, v7, 10, v14")
    if PFPOS == 1: pf1()
    a("  s_waitcnt lgkmcnt(0)")
    a("  s_barrier")
    stamp(2)
    if PFPOS == 2: pf1()
    a("  s_cmp_lg_u32 s15, 0\n  s_cbranch_scc1 L1_noscan")
    a(f"  ds_read_b128 v[24:27], v22 offset:{K1_CNT}")
    a("  s_waitcnt lgkmcnt(0)")
    a("  v_add_u32 v28, v24, v25\n  v_add_u32 v29, v28, v26\n  v_add_u32 v30, v29, v27\n  v_mov_b32 v31, v30")
    wave_scan(a, 31)
    a("  v_sub_u32 v32, v31, v30\n  v_add_u32 v33, v32, v24\n  v_add_u32 v34, v32, v28\n  v_add_u32 v35, v32, v29")
    a(f"  ds_write_b128 v22, v[32:35] offset:{K1_BASE}")
    a("  v_lshl_or_b32 v36, v24, 16, v32\n  v_lshl_or_b32 v37, v25, 16, v33\n  v_lshl_or_b32 v38, v26, 16, v34\n  v_lshl_or_b32 v39, v27, 16, v35")
    a("  s_lshl_b32 s12, s2, 10")
    a(f"  buffer_store_dwordx4 v[36:39], v22, s[{sWS}:{sWS+3}], s12 offen offset:{OFFS}")
    a("  s_waitcnt lgkmcnt(0)")
    a("L1_noscan:")
    a("  s_barrier")
    stamp(3)
    a(f"  ds_read_b32 v19, v16 offset:{K1_BASE}")
    a("  s_waitcnt lgkmcnt(0)")
    a("  v_add_u32 v19, v19, v18")
    if not PACK:
        a("  v_lshlrev_b32 v9, 5, v3\n  v_add_u32 v19, s14, v19\n  v_lshlrev_b32 v19, 4, v19")
        a(f"  s_mov_b32 s12, {RECS}")
        a("  s_cmp_lg_u32 s15, 0\n  s_cbranch_scc1 L1_u1")
        a(f"  s_waitcnt vmcnt({P1+1})\n  s_branch L1_u2")
        a("L1_u1:")
        a(f"  s_waitcnt vmcnt({P1})")
        a("L1_u2:")
        a(f"  buffer_store_dwordx4 v[8:11], v19, s[{sWS}:{sWS+3}], s12 offen")
        a("  s_branch L1_fin")
    a("  v_add_u32 v9, s14, v19\n  v_lshlrev_b32 v9, 5, v9")
    a("  v_lshlrev_b32 v20, 4, v19\n  v_lshlrev_b32 v19, 2, v19")
    a(f"  ds_write_b32 v19, v0 offset:{K1_INV}")
    a("  s_cmp_lg_u32 s15, 0\n  s_cbranch_scc1 L1_w1")
    a(f"  s_waitcnt vmcnt({P1+1})\n  s_branch L1_w2")
    a("L1_w1:")
    a(f"  s_waitcnt vmcnt({P1})")
    a("L1_w2:")
    a(f"  ds_write_b128 v20, v[8:11] offset:{K1_HDR}")
    a("  s_waitcnt lgkmcnt(0)")
    a("  s_barrier")
    a("  v_lshlrev_b32 v20, 4, v0")
    a("  v_lshrrev_b32 v19, 1, v0\n  v_lshlrev_b32 v19, 2, v19")
    a(f"  ds_read_b32 v24, v19 offset:{K1_INV}")
    a(f"  ds_read_b32 v25, v19 offset:{K1_INV + 1280}")
    a(f"  ds_read_b128 v[8:11], v20 offset:{K1_HDR}")
    a("  v_and_b32 v19, 1, v0\n  v_lshlrev_b32 v19, 4, v19")
    a(f"  s_lshl_b32 s12, s14, 4\n  s_add_u32 s12, s12, {RECS}")
    a(f"  s_lshl_b32 s13, s14, 5\n  s_add_u32 s13, s13, {EFS}")
    a("  s_waitcnt lgkmcnt(1)")
    a("  v_lshl_add_u32 v24, v24, 5, v19\n  v_lshl_add_u32 v25, v25, 5, v19")
    a(f"  ds_read_b128 v[28:31], v24 offset:{K1_EF}")
    a(f"  ds_read_b128 v[32:35], v25 offset:{K1_EF}")
    a("  s_waitcnt lgkmcnt(2)")
    a(f"  buffer_store_dwordx4 v[8:11], v20, s[{sWS}:{sWS+3}], s12 offen")
    a("  s_waitcnt lgkmcnt(1)")
    a(f"  buffer_store_dwordx4 v[28:31], v20, s[{sWS}:{sWS+3}], s13 offen")
    a(f"  s_add_u32 s13, s13, {CH*16}")
    a("  s_waitcnt lgkmcnt(0)")
    a(f"  buffer_store_dwordx4 v[32:35], v20, s[{sWS}:{sWS+3}], s13 offen")
    a("L1_fin:")
    if stamps:
        stamp(4)
        a("  s_waitcnt vmcnt(0)")
        stamp(5)
        a("  s_waitcnt lgkmcnt(0)")
        a("  s_mov_b32 s44, s40\n  s_mov_b32 s45, s41\n  s_mov_b32 s46, 0x10000000\n  s_mov_b32 s47, 0x20000")
        a(f"  s_mul_i32 s12, s2, 10\n  s_add_u32 s12, s12, s15\n  s_mul_i32 s12, s12, 64\n  s_add_u32 s12, s12, {STAMP1_OFF}")
        a("  v_mov_b32 v2, 0")
        for i in range(6):
            a(f"  v_mov_b32 v20, s{48+2*i}\n  v_mov_b32 v21, s{48+2*i+1}")
            a(f"  buffer_store_dwordx2 v[20:21], v2, s[44:47], s12 offen offset:{8*i}")
            a("  s_waitcnt vmcnt(0)")
    a("L1_end:")
    a("  s_endpgm")

L_CNT = 0
L_FLAG = 2048
L_ZERO = L_FLAG + 16
L_DEG = L_FLAG + 128
L_RANK = L_DEG + 256
L_INV = L_RANK + 256
CAPFILL = 256
CAPW = CAPFILL + 32
L_LIST = 4096
L_WMIX = L_LIST + 8 * CAPW * 16
L_EFL = L_WMIX + 128 * 256
AGG_STRIDE = 1088
L_WRAD = L_EFL + 8 * CAPW * 32
LDS2 = L_WRAD + 4096 + 256
DUMMY_W0 = 0x7FFFFC00 | 40
DUMMY_W1 = 0x7FFFFFE0

def gen_k2(a, opt):
    stamps = opt.get("stamps", False)
    R1 = 360 * opt.get("p1", 0)
    NR = 8
    v = V(1)
    vLane = v.get(); vL16 = v.get(); vT0 = v.get(); vT1 = v.get(); vT2 = v.get(); vT3 = v.get()
    vLen = v.get(); vRecOff = v.get(); vJ = v.get()
    vRecA = v.get(); vA1A = v.get(); vA2A = v.get(); vInc1 = v.get(); vInc2 = v.get(); vW0 = v.get()
    vREC = v.get(4, 4)
    vKP = v.get(2, 2); vKPn = v.get(2, 2)
    vA = v.get(8, 4)
    vCG = v.get(8, 2)
    vWB = v.get(16, 4)
    vRR = v.get(8, 2); vT = v.get(8, 2)
    vZZ = v.get(64, 4)
    vACC = v.get(48, 4)
    vROW = v.get(32, 4)
    vTP = v.get(32, 4)
    NV = v.n
    assert NV <= 256, NV
    pREC = vROW; pKEY = vTP; pRANK = vTP + 8; pBASE = vTP + 16
    pW = vZZ
    vOL = vTP + 24; vRem = vTP + 25; vD0 = vTP + 26; vD1 = vTP + 27
    vPF = vZZ + 32
    sX, sWS, sOUT, sTMP = 8, 12, 20, 24
    sEFLW = 16; sLISTW = 17; sPF = 18; sNODE = 19
    sWAVE, sN, sG, sKB, sSTEP, sMAXL, sT0, sT1, sFLAG = 28, 29, 30, 31, 32, 33, 35, 36, 37
    sNLOG = 38; sM = 40; sW = 56; sO = 72; sSAVE = 76; sP1 = 78; sP2 = 79; sOFFSRD = 80; sST = 88
    NS = 102
    def stamp(i):
        if stamps:
            if opt.get("clk") and i in (1, 2): return
            a(f"  s_memrealtime s[{sST+2*i}:{sST+2*i+1}]")
            if opt.get("clk") and i in (3, 4): a(f"  s_memtime s[{sST+2*(i-2)}:{sST+2*(i-2)+1}]")

    a(f".globl {K2}\n.p2align 8\n.type {K2},@function\n{K2}:")
    a(f"  s_cmp_ge_u32 s2, {NB}\n  s_cbranch_scc1 L2_end")
    stamp(0)
    PACK = opt.get("pack", 1)
    PFA = opt.get("pfa", 0); PFB = opt.get("pfb", 0)
    a("  s_load_dwordx2 s[6:7], s[0:1], 80")
    a("  s_load_dwordx2 s[4:5], s[0:1], 0")
    a("  s_load_dwordx4 s[84:87], s[0:1], 40")
    a("  s_load_dwordx4 s[40:43], s[0:1], 56")
    if not PACK: a("  s_load_dwordx2 s[44:45], s[0:1], 32")
    a(f"  v_and_b32 v{vLane}, 63, v0\n  v_lshrrev_b32 v{vT0}, 6, v0\n  v_lshlrev_b32 v{vL16}, 4, v{vLane}")
    a(f"  v_readfirstlane_b32 s{sWAVE}, v{vT0}")
    a(f"  v_lshlrev_b32 v{vT1}, 2, v0\n  v_mov_b32 v{vT2}, 0")
    a(f"  ds_write_b32 v{vT1}, v{vT2} offset:{L_CNT}")
    a(f"  v_cmp_gt_u32 vcc, 16, v0\n  s_and_saveexec_b64 s[{sSAVE}:{sSAVE+1}], vcc")
    a(f"  ds_write_b32 v{vT1}, v{vT2} offset:{L_FLAG}")
    a(f"  s_mov_b64 exec, s[{sSAVE}:{sSAVE+1}]")
    a(f"  v_cmp_gt_u32 vcc, 64, v0\n  s_and_saveexec_b64 s[{sSAVE}:{sSAVE+1}], vcc")
    a(f"  ds_write_b32 v{vT1}, v0 offset:{L_DEG}\n  ds_write_b32 v{vT1}, v{vT2} offset:{L_RANK}")
    a(f"  s_mov_b64 exec, s[{sSAVE}:{sSAVE+1}]")
    a(f"  v_lshrrev_b32 v{vT0}, 1, v0\n  v_and_b32 v{vJ}, 1, v0")
    a(f"  s_and_b32 s{sT0}, s2, 7\n  s_lshl_b32 s{sT0}, s{sT0}, 5\n  s_lshr_b32 s{sT1}, s2, 3\n  s_add_u32 s{sT0}, s{sT0}, s{sT1}\n  s_lshl_b32 s{sT0}, s{sT0}, 2")
    a(f"  v_lshlrev_b32 v{vT3}, 10, v{vT0}\n  v_mul_u32_u24 v{vRecOff}, {CH}, v{vT0}")
    a(f"  v_lshrrev_b32 v{vT0}, 4, v{vLane}\n  v_and_b32 v{vT1}, 15, v{vLane}\n  v_lshlrev_b32 v{vT2}, 1, v{vT0}")
    a(f"  v_xor_b32 v{vD0}, v{vT1}, v{vT2}\n  v_xor_b32 v{vD1}, 8, v{vD0}\n  v_lshlrev_b32 v{vT0}, 8, v{vT0}")
    a(f"  v_lshl_add_u32 v{vD0}, v{vD0}, 4, v{vT0}\n  v_lshl_add_u32 v{vD1}, v{vD1}, 4, v{vT0}")
    a(f"  s_mul_i32 s{sLISTW}, s{sWAVE}, {CAPW*16}\n  s_add_u32 s{sLISTW}, s{sLISTW}, {L_LIST}")
    a(f"  s_mul_i32 s{sEFLW}, s{sWAVE}, {CAPW*32}\n  s_add_u32 s{sEFLW}, s{sEFLW}, {L_EFL}")
    if PFA + PFB:
        hwslot(a, sPF, sT1)
        a(f"  s_lshl_b32 s{sPF}, s{sPF}, 3\n  s_add_u32 s{sPF}, s{sPF}, s{sWAVE}\n  s_add_u32 s{sPF}, s{sPF}, {R1}\n  s_lshl_b32 s{sPF}, s{sPF}, 10")
    a("  s_waitcnt lgkmcnt(0)")
    srd(a, sOFFSRD, 6, NCH * 1024)
    a(f"  buffer_load_dword v{vOL}, v{vT3}, s[{sOFFSRD}:{sOFFSRD+3}], s{sT0} offen")
    srd(a, sTMP, 84, 16 * C * 2)
    a(f"  s_lshl_b32 s{sT1}, s{sWAVE}, 10\n  s_add_u32 m0, s{sT1}, {L_WRAD}")
    a(f"  s_cmp_ge_u32 s{sWAVE}, 4\n  s_cbranch_scc0 L2_aux_go")
    srd(a, sTMP, 86, 128)
    a(f"  s_mov_b32 s{sT1}, 0\n  s_mov_b32 m0, {L_WRAD+4096}\n  s_mov_b64 exec, 0xff")
    a(f"  s_cmp_eq_u32 s{sWAVE}, 4\n  s_cbranch_scc1 L2_aux_go")
    a(f"  s_movk_i32 s{sT1}, 0x1000")
    a(f"  s_mov_b32 m0, {L_WRAD+4096+128}")
    a("L2_aux_go:")
    a("  s_nop 0")
    a(f"  buffer_load_dwordx4 v{vL16}, s[{sTMP}:{sTMP+3}], s{sT1} offen lds")
    a("  s_mov_b64 exec, -1")
    srd(a, sTMP, 40, C * C * 2)
    a(f"  s_lshl_b32 s{sT1}, s{sWAVE}, 12")
    for i in range(4):
        a(f"  s_add_u32 m0, s{sT1}, {L_WMIX}\n  s_nop 0")
        a(f"  buffer_load_dwordx4 v{vD0 if i % 2 == 0 else vD1}, s[{sTMP}:{sTMP+3}], s{sT1} offen lds")
        if i < 3: a(f"  s_add_u32 s{sT1}, s{sT1}, 1024")
    srd(a, sX, 4, N * 1024)
    def warm(n):
        for k in range(n):
            a(f"  buffer_load_dwordx4 v[{vPF}:{vPF+3}], v{vL16}, s[{sX}:{sX+3}], s{sPF} offen")
            a(f"  s_add_u32 s{sPF}, s{sPF}, {288*1024}")
    warm(PFA)
    srd(a, sWS, 6, WS_USED)
    srd(a, sOUT, 42, N * 1024)
    sFE = sWS
    if not PACK:
        sFE = 4
        if stamps: a("  s_mov_b32 s100, s6\n  s_mov_b32 s101, s7")
        srd(a, sFE, 44, E * 32)
    a(f"  s_mov_b32 s{sKB}, 0\n  s_mov_b32 s{sSTEP}, {2*NR}")
    for r in range(NR):
        a(f"  v_mov_b32 v{pREC+4*r+1}, -1")
    for r in range(48):
        a(f"  v_mov_b32 v{vACC+r}, 0")
    a(f"  s_mov_b32 s{sNLOG}, 0xbfb8aa3b\n  s_mov_b32 s{sNLOG+1}, 0xbfb8aa3b")
    a(f"  s_mov_b32 s{sP1}, 0x05040100\n  s_mov_b32 s{sP2}, 0x07060302")
    a("  s_barrier")
    a(f"  s_waitcnt vmcnt({5 + PFA})")
    stamp(1)
    a(f"  v_lshrrev_b32 v{vLen}, 16, v{vOL}\n  v_and_b32 v{vOL}, 0xffff, v{vOL}")
    a(f"  v_add3_u32 v{vRecOff}, v{vRecOff}, v{vOL}, v{vJ}\n  v_lshlrev_b32 v{vRecOff}, 4, v{vRecOff}")

    def rec_masks():
        a(f"  s_add_u32 s{sT0}, s{sKB}, s{sSTEP}")
        a(f"  v_min_u32 v{vRem}, s{sT0}, v{vLen}\n  v_subrev_u32 v{vRem}, s{sKB}, v{vRem}\n  v_sub_u32 v{vRem}, v{vRem}, v{vJ}")
        a(f"  s_lshl_b32 s{sT0}, s{sKB}, 4\n  s_add_u32 s{sT0}, s{sT0}, {RECS}")
        for r in range(NR):
            a(f"  v_cmp_lt_i32 s[{sM+2*r}:{sM+2*r+1}], {2*r}, v{vRem}")
        a("  s_nop 3")
    def rec_load(r):
        a(f"  s_mov_b64 exec, s[{sM+2*r}:{sM+2*r+1}]")
        a(f"  buffer_load_dwordx4 v[{pREC+4*r}:{pREC+4*r+3}], v{vRecOff}, s[{sWS}:{sWS+3}], s{sT0} offen offset:{32*r}")

    rec_masks()
    for r in range(NR):
        a(f"  s_cmp_eq_u64 s[{sM+2*r}:{sM+2*r+1}], 0\n  s_cbranch_scc1 L2_first_{r}")
        rec_load(r)
    NY = PFB
    for r in range(NR, -1, -1):
        a(f"L2_first_{r}:")
        a("  s_mov_b64 exec, -1")
        warm(PFB)
        a(f"  s_waitcnt vmcnt({r + NY})")
        if r > 0: a("  s_branch L2_stage")
    a("L2_stage:")
    a(f"  v_cmp_lt_u32 vcc, {2*NR}, v{vLen}\n  s_and_saveexec_b64 s[{sSAVE}:{sSAVE+1}], vcc")
    a(f"  s_cbranch_execz L2_nomax")
    a(f"  v_mov_b32 v{vT1}, {L_FLAG+4}\n  ds_max_u32 v{vT1}, v{vLen}")
    a(f"L2_nomax:")
    a(f"  s_mov_b64 exec, s[{sSAVE}:{sSAVE+1}]")
    a(f"  s_waitcnt vmcnt({NY})")
    stamp(2)
    def touch(tag):
        for r in range(NR):
            a(f"  s_cmp_eq_u64 s[{sM+2*r}:{sM+2*r+1}], 0\n  s_cbranch_scc1 L2_touch_done{tag}")
            a(f"  s_mov_b64 exec, s[{sM+2*r}:{sM+2*r+1}]")
            a(f"  buffer_load_dword v{vPF}, v{pREC+4*r+1}, s[{sFE}:{sFE+3}], 0 offen")
        a(f"L2_touch_done{tag}:")
        a("  s_mov_b64 exec, -1")
    TOUCH = opt.get("touch", 0) if not PACK else 0
    if TOUCH == 1: touch(1)
    a(f"  v_mov_b32 v{vT3}, 64")
    for r in range(NR):
        a(f"  s_cmp_eq_u64 s[{sM+2*r}:{sM+2*r+1}], 0\n  s_cbranch_scc1 L2_deg_done")
        a(f"  s_mov_b64 exec, s[{sM+2*r}:{sM+2*r+1}]")
        a(f"  v_and_b32 v{vT0}, 63, v{pREC+4*r}\n  v_lshlrev_b32 v{vT0}, 2, v{vT0}")
        a(f"  ds_add_u32 v{vT0}, v{vT3} offset:{L_DEG}")
    a("L2_deg_done:")
    a("  s_mov_b64 exec, -1\n  s_waitcnt lgkmcnt(0)\n  s_barrier")
    a(f"  v_lshlrev_b32 v{vT0}, 2, v{vLane}\n  s_mul_i32 s{sT0}, s{sWAVE}, 20\n  v_mov_b32 v{vT1}, s{sT0}")
    a(f"  ds_read_b32 v{vT2}, v{vT0} offset:{L_DEG}")
    for j in range(5):
        a(f"  ds_read_b32 v{pKEY+j}, v{vT1} offset:{L_DEG+4*j}")
    a(f"  v_mov_b32 v{vT3}, 0")
    a("  s_waitcnt lgkmcnt(0)")
    for j in range(5):
        a(f"  v_cmp_gt_u32 s[{sW+2*j}:{sW+2*j+1}], v{pKEY+j}, v{vT2}")
    a("  s_nop 1")
    for j in range(5):
        a(f"  v_addc_co_u32 v{vT3}, vcc, 0, v{vT3}, s[{sW+2*j}:{sW+2*j+1}]")
    a(f"  ds_add_u32 v{vT0}, v{vT3} offset:{L_RANK}")
    a("  s_waitcnt lgkmcnt(0)\n  s_barrier")
    a(f"  s_cmp_lg_u32 s{sWAVE}, 0\n  s_cbranch_scc1 L2_pass_keys")
    a(f"  ds_read_b32 v{vT2}, v{vT0} offset:{L_RANK}")
    a(f"  v_cmp_gt_u32 vcc, {NPB}, v{vLane}\n  s_and_saveexec_b64 s[{sSAVE}:{sSAVE+1}], vcc")
    a(f"  s_waitcnt lgkmcnt(0)\n  v_lshlrev_b32 v{vT2}, 2, v{vT2}")
    a(f"  ds_write_b32 v{vT2}, v{vLane} offset:{L_INV}")
    a(f"  s_mov_b64 exec, s[{sSAVE}:{sSAVE+1}]")
    a("  s_branch L2_pass_keys")

    a("L2_pass:")
    rec_masks()
    for r in range(NR):
        a(f"  s_cmp_eq_u64 s[{sM+2*r}:{sM+2*r+1}], 0\n  s_cbranch_scc1 L2_ld_done")
        rec_load(r)
    a("L2_ld_done:")
    a("  s_mov_b64 exec, -1\n  s_waitcnt vmcnt(0)")
    a("L2_pass_keys:")
    for r in range(NR):
        a(f"  s_cmp_eq_u64 s[{sM+2*r}:{sM+2*r+1}], 0\n  s_cbranch_scc1 L2_rk_done")
        a(f"  s_mov_b64 exec, s[{sM+2*r}:{sM+2*r+1}]")
        a(f"  v_and_b32 v{vT0}, 63, v{pREC+4*r}\n  v_lshlrev_b32 v{vT0}, 2, v{vT0}")
        a(f"  ds_read_b32 v{pBASE+r}, v{vT0} offset:{L_RANK}")
    a("L2_rk_done:")
    a(f"  s_mov_b64 exec, -1\n  v_mov_b32 v{vT3}, 1\n  s_waitcnt lgkmcnt(0)")
    for r in range(NR):
        a(f"  s_cmp_eq_u64 s[{sM+2*r}:{sM+2*r+1}], 0\n  s_cbranch_scc1 L2_key_done")
        a(f"  s_mov_b64 exec, s[{sM+2*r}:{sM+2*r+1}]")
        w0 = pREC + 4 * r; rk = pBASE + r
        a(f"  v_bfe_i32 v{vT0}, v{rk}, 3, 1\n  v_xor_b32 v{vT0}, v{vT0}, v{rk}\n  v_and_b32 v{vT0}, 7, v{vT0}")
        a(f"  v_lshrrev_b32 v{vT1}, 18, v{w0}\n  v_lshlrev_b32 v{vT1}, 2, v{vT1}")
        a(f"  v_lshl_add_u32 v{pKEY+r}, v{vT0}, 8, v{vT1}")
        a(f"  ds_add_rtn_u32 v{pRANK+r}, v{pKEY+r}, v{vT3} offset:{L_CNT}")
        a(f"  v_and_b32 v{w0}, 0xffffffc0, v{w0}\n  v_and_or_b32 v{w0}, v{rk}, 56, v{w0}")
    a("L2_key_done:")
    a("  s_mov_b64 exec, -1")
    if TOUCH == 2: touch(2)
    a("  s_waitcnt lgkmcnt(0)\n  s_barrier")
    if TOUCH == 3: touch(3)
    a(f"  s_lshl_b32 s{sT0}, s{sWAVE}, 8\n  v_lshl_add_u32 v{vT0}, v{vLane}, 2, s{sT0}")
    a(f"  ds_read_b32 v{vT1}, v{vT0} offset:{L_CNT}\n  s_waitcnt lgkmcnt(0)\n  v_mov_b32 v{vT2}, v{vT1}")
    wave_scan(a, vT2)
    a(f"  v_sub_u32 v{vT1}, v{vT2}, v{vT1}")
    a(f"  v_readlane_b32 s{sN}, v{vT2}, 63")
    a(f"  ds_write_b32 v{vT0}, v{vT1} offset:{L_CNT}")
    a(f"  s_cmp_gt_u32 s{sN}, {CAPFILL}\n  s_cbranch_scc0 L2_noovf")
    a(f"  v_mov_b32 v{vT0}, {L_FLAG}\n  v_mov_b32 v{vT1}, 1\n  ds_write_b32 v{vT0}, v{vT1}")
    a("  s_branch L2_padded")
    a("L2_noovf:")
    a(f"  s_lshl_b32 s{sT0}, s{sN}, 4\n  s_add_u32 s{sT0}, s{sT0}, s{sLISTW}\n  v_add_u32 v{vT0}, s{sT0}, v{vL16}")
    a(f"  v_mov_b32 v{vREC}, {DUMMY_W0}\n  v_mov_b32 v{vREC+1}, {DUMMY_W1}\n  v_mov_b32 v{vREC+2}, 0\n  v_mov_b32 v{vREC+3}, 0")
    a(f"  s_mov_b32 exec_hi, 0\n  ds_write_b128 v{vT0}, v[{vREC}:{vREC+3}]\n  s_mov_b64 exec, -1")
    a("L2_padded:")
    a("  s_waitcnt lgkmcnt(0)\n  s_barrier")
    if TOUCH == 4: touch(4)
    a(f"  v_mov_b32 v{vT0}, {L_FLAG}\n  ds_read_b64 v[{vKPn}:{vKPn+1}], v{vT0}")
    for r in range(NR):
        a(f"  s_cmp_eq_u64 s[{sM+2*r}:{sM+2*r+1}], 0\n  s_cbranch_scc1 L2_base_done")
        a(f"  s_mov_b64 exec, s[{sM+2*r}:{sM+2*r+1}]")
        a(f"  ds_read_b32 v{pBASE+r}, v{pKEY+r} offset:{L_CNT}")
    a("L2_base_done:")
    a("  s_mov_b64 exec, -1\n  s_waitcnt lgkmcnt(0)")
    a(f"  v_readfirstlane_b32 s{sFLAG}, v{vKPn}\n  v_readfirstlane_b32 s{sMAXL}, v{vKPn+1}")
    a(f"  s_cmp_lg_u32 s{sFLAG}, 0\n  s_cbranch_scc1 L2_overflow")
    for r in range(NR):
        a(f"  s_cmp_eq_u64 s[{sM+2*r}:{sM+2*r+1}], 0\n  s_cbranch_scc1 L2_scat_done")
        a(f"  s_mov_b64 exec, s[{sM+2*r}:{sM+2*r+1}]")
        w0 = pREC + 4 * r
        a(f"  v_lshrrev_b32 v{vT0}, 8, v{pKEY+r}\n  v_mul_u32_u24 v{vT0}, {CAPW*16}, v{vT0}")
        a(f"  v_add_u32 v{vT1}, v{pBASE+r}, v{pRANK+r}\n  v_lshl_add_u32 v{vT0}, v{vT1}, 4, v{vT0}")
        a(f"  ds_write_b128 v{vT0}, v[{w0}:{w0+3}] offset:{L_LIST}")
    a("L2_scat_done:")
    a("  s_mov_b64 exec, -1\n  s_waitcnt lgkmcnt(0)\n  s_barrier")
    stamp(3)

    def kcompute(dst, tmp):
        for i in range(4): a(f"  v_dot2_f32_bf16 v{tmp+i}, v{vREC+3}, v{vCG+2*i+1}, 0")
        for i in range(4): a(f"  v_dot2_f32_bf16 v{tmp+i}, v{vREC+2}, v{vCG+2*i}, v{tmp+i}")
        a("  s_nop 2")
        a(f"  v_cvt_pk_bf16_f32 v{dst}, v{tmp}, v{tmp+1}\n  v_cvt_pk_bf16_f32 v{dst+1}, v{tmp+2}, v{tmp+3}")
    def bigm(i, zb):
        t, half = i >> 1, i & 1
        z = vZZ + 32 * zb + 16 * t
        c = "0" if half == 0 else f"v[{z}:{z+15}]"
        A_ = vA + 4 * half; B_ = vWB + (t * 2 + half) * 4
        return f"  v_mfma_f32_32x32x16_bf16 v[{z}:{z+15}], v[{A_}:{A_+3}], v[{B_}:{B_+3}], {c}"
    def aread():
        a(f"  ds_read_b128 v[{vA}:{vA+3}], v{vA1A}\n  ds_read_b128 v[{vA+4}:{vA+7}], v{vA2A}")
        a(f"  v_add_u32 v{vA1A}, v{vA1A}, v{vInc1}\n  v_add_u32 v{vA2A}, v{vA2A}, v{vInc2}")
    def rowload(slot, so):
        a(f"  buffer_load_dwordx4 v[{vROW+4*slot}:{vROW+4*slot+3}], v{vL16}, s[{sX}:{sX+3}], s{so} offen{' nt' if opt.get('xnt') else ''}")
    def rowoff(dst, src):
        if opt.get("nomem"): a(f"  s_and_b32 s{dst}, s{src}, 0x3c00")
        else: a(f"  s_andn2_b32 s{dst}, s{src}, 63")

    if opt.get("prio") == 1:
        a(f"  s_cmp_ge_u32 s{sWAVE}, 4\n  s_cbranch_scc0 L2_noprio\n  s_setprio 1\nL2_noprio:")
    a(f"  s_cmp_eq_u32 s{sN}, 0\n  s_cbranch_scc1 L2_loop_exit")
    a(f"  s_add_u32 s{sG}, s{sN}, 3\n  s_lshr_b32 s{sG}, s{sG}, 2")
    a(f"  v_lshrrev_b32 v{vT0}, 2, v{vLane}\n  v_lshlrev_b32 v{vT0}, 4, v{vT0}\n  v_add_u32 v{vRecA}, s{sLISTW}, v{vT0}")
    a(f"  ds_read_b128 v[{vREC}:{vREC+3}], v{vRecA}")
    a(f"  v_lshrrev_b32 v{vT0}, 1, v{vLane}\n  v_lshlrev_b32 v{vT0}, 4, v{vT0}\n  v_add_u32 v{vT0}, s{sLISTW}, v{vT0}")
    for i in range(4):
        a(f"  ds_read_b32 v{vT+i}, v{vT0} offset:{i*512+4}")
    a(f"  v_and_b32 v{vT1}, 1, v{vLane}\n  v_lshlrev_b32 v{vT1}, 4, v{vT1}")
    a(f"  v_bfe_u32 v{vT2}, v{vLane}, 3, 2\n  v_lshlrev_b32 v{vT2}, 2, v{vT2}\n  v_and_b32 v{vT3}, 3, v{vLane}\n  v_add_u32 v{vT2}, v{vT2}, v{vT3}")
    a(f"  v_lshlrev_b32 v{vT2}, 5, v{vT2}\n  v_lshrrev_b32 v{vT3}, 5, v{vLane}\n  v_lshl_add_u32 v{vT2}, v{vT3}, 4, v{vT2}\n  v_add_u32 v{vT2}, s{sEFLW}, v{vT2}")
    a(f"  v_and_b32 v{vT3}, 4, v{vLane}\n  v_cmp_eq_u32 vcc, 0, v{vT3}")
    a(f"  v_mov_b32 v{vT3}, {L_ZERO}\n  v_mov_b32 v{vInc2}, 512\n  v_mov_b32 v{vW0}, 0")
    a(f"  v_cndmask_b32 v{vA1A}, v{vT3}, v{vT2}, vcc\n  v_cndmask_b32 v{vA2A}, v{vT2}, v{vT3}, vcc")
    a(f"  v_cndmask_b32 v{vInc1}, v{vW0}, v{vInc2}, vcc\n  v_cndmask_b32 v{vInc2}, v{vInc2}, v{vW0}, vcc")
    a(f"  s_mov_b32 s{sT1}, {EFS if PACK else 0}\n  s_mov_b32 m0, s{sEFLW}")
    a(f"  v_lshrrev_b32 v{vT2}, 1, v{vLane}\n  v_mov_b32 v{vT3}, {DUMMY_W1}")
    a("  s_waitcnt lgkmcnt(0)")
    def efdma(i):
        a(f"  v_add_u32 v{vT+4}, {32*i}, v{vT2}\n  v_cmp_gt_u32 vcc, s{sN}, v{vT+4}")
        a(f"  v_add_u32 v{vT+i}, v{vT+i}, v{vT1}")
        a(f"  s_add_u32 m0, s{sEFLW}, {1024*i}")
        a(f"  v_cndmask_b32 v{vT+i}, v{vT3}, v{vT+i}, vcc")
        a(f"  buffer_load_dwordx4 v{vT+i}, s[{sFE}:{sFE+3}], s{sT1} offen lds")
    a(f"  s_cmp_le_u32 s{sN}, 128\n  s_cbranch_scc1 L2_dma_small")
    a(f"  s_movk_i32 s{sT0}, 128")
    a("L2_dma_more:")
    a(f"  s_lshl_b32 s{sO}, s{sT0}, 4\n  v_add_u32 v{vT+5}, s{sO}, v{vT0}\n  ds_read_b32 v{vT+5}, v{vT+5} offset:4")
    a(f"  s_lshl_b32 s{sO}, s{sT0}, 5\n  s_add_u32 m0, s{sEFLW}, s{sO}\n  s_waitcnt lgkmcnt(0)")
    a(f"  v_add_u32 v{vT+5}, v{vT+5}, v{vT1}")
    a(f"  buffer_load_dwordx4 v{vT+5}, s[{sFE}:{sFE+3}], s{sT1} offen lds")
    a(f"  s_add_u32 s{sT0}, s{sT0}, 32\n  s_cmp_lt_u32 s{sT0}, s{sN}\n  s_cbranch_scc1 L2_dma_more")
    a("L2_dma_small:")
    efdma(0)
    for j in range(8):
        a(f"  v_readlane_b32 s{sW+j}, v{vREC}, {4*j}")
        rowoff(sO, sW + j)
        rowload(j, sO)
    for i in range(1, 4): efdma(i)
    a(f"  v_mov_b32 v{vW0}, v{vREC}")
    a(f"  v_and_b32 v{vT2}, 3, v{vLane}\n  v_lshlrev_b32 v{vT2}, 1, v{vT2}\n  v_add_u32 v{vT2}, {L_WRAD}, v{vT2}")
    for i in range(4):
        for f in range(4):
            a(f"  ds_read_u16 v{vZZ+16+4*i+f}, v{vT2} offset:{4096+(i*16+f*4)*2}")
    a("  s_waitcnt lgkmcnt(0)")
    for i in range(4):
        a(f"  v_lshl_or_b32 v{vCG+2*i}, v{vZZ+16+4*i+1}, 16, v{vZZ+16+4*i}")
        a(f"  v_lshl_or_b32 v{vCG+2*i+1}, v{vZZ+16+4*i+3}, 16, v{vZZ+16+4*i+2}")
    a(f"  v_lshrrev_b32 v{vT1}, 5, v{vLane}\n  v_lshlrev_b32 v{vT1}, 11, v{vT1}\n  v_and_b32 v{vT2}, 31, v{vLane}\n  v_lshl_add_u32 v{vT1}, v{vT2}, 2, v{vT1}\n  v_add_u32 v{vT1}, {L_WRAD}, v{vT1}")
    for half in range(2):
        for j in range(8):
            a(f"  ds_read_b32 v{pW+8*half+j}, v{vT1} offset:{j*256+half*128}")
    a("  s_waitcnt lgkmcnt(0)")
    for t in range(2):
        for half in range(2):
            for jj in range(4):
                a(f"  v_perm_b32 v{vWB+(t*2+half)*4+jj}, v{pW+8*half+2*jj+1}, v{pW+8*half+2*jj}, s{sP1 if t == 0 else sP2}")
    kcompute(vKP, vTP)
    a(f"  v_add_u32 v{vRecA}, 256, v{vRecA}")
    a("  s_waitcnt vmcnt(11)")
    aread()
    a("  s_waitcnt lgkmcnt(0)")
    for i in range(4): a(bigm(i, 0))
    a("  s_nop 7")
    aread()
    a("  s_nop 7")
    def inter(x, y):
        for i in range(max(len(x), len(y))):
            if i < len(x): a(x[i])
            if i < len(y): a(y[i])
    def batch(cb, first, tail):
        for gi in range(4):
            z0 = vZZ + 32 * cb + 4 * gi; z1 = z0 + 16
            zp = [z0, z0 + 2, z1, z1 + 2]
            nset = (gi + 2) % 4
            if opt.get("prio") == 3:
                a(f"  s_cmp_ge_u32 s{sWAVE}, 4\n  s_cbranch_scc{1 if gi % 2 == 0 else 0} L2_pl_{cb}_{gi}_{int(first)}\n  s_setprio 1\n  s_branch L2_ph_{cb}_{gi}_{int(first)}\nL2_pl_{cb}_{gi}_{int(first)}:\n  s_setprio 0\nL2_ph_{cb}_{gi}_{int(first)}:")
            if opt.get("prio") == 4 and gi == 0:
                a(f"  s_cmp_ge_u32 s{sWAVE}, 4\n  s_cbranch_scc{1 if cb == 0 else 0} L2_pl_{cb}_{gi}_{int(first)}\n  s_setprio 1\n  s_branch L2_ph_{cb}_{gi}_{int(first)}\nL2_pl_{cb}_{gi}_{int(first)}:\n  s_setprio 0\nL2_ph_{cb}_{gi}_{int(first)}:")
            if gi == 0:
                a("  s_waitcnt lgkmcnt(0)")
                a(f"  ds_read_b128 v[{vREC}:{vREC+3}], v{vRecA}")
            if gi == 1:
                a("  s_waitcnt lgkmcnt(0)")
            sm = [f"  v_pk_mul_f32 v[{vT+2*p}:{vT+2*p+1}], v[{zp[p]}:{zp[p]+1}], s[{sNLOG}:{sNLOG+1}]" for p in range(4)]
            ex = [f"  v_exp_f32 v{vT+i}, v{vT+i}" for i in range(8)]
            sa = [f"  v_pk_add_f32 v[{vT+2*p}:{vT+2*p+1}], v[{vT+2*p}:{vT+2*p+1}], 1.0 op_sel_hi:[1,0]" for p in range(4)]
            rc = [f"  v_rcp_f32 v{vT+i}, v{vT+i}" for i in range(8)]
            sr = [f"  v_pk_mul_f32 v[{vRR+2*p}:{vRR+2*p+1}], v[{zp[p]}:{zp[p]+1}], v[{vT+2*p}:{vT+2*p+1}]" for p in range(4)]
            rl = []
            for q in range(4):
                src, ln = (vW0, 4 * (4 * (gi + 2) + q)) if gi < 2 else (vREC, 4 * (4 * (gi - 2) + q))
                rl.append(f"  v_readlane_b32 s{sW+4*nset+q}, v{src}, {ln}")
            tp = []
            for r in range(4):
                sl = (gi % 2) * 4 + r
                for t in range(2):
                    tp.append(f"  v_mfma_f32_4x4x4_16b_bf16 v[{vTP+8*r+4*t}:{vTP+8*r+4*t+3}], v[{vKP}:{vKP+1}], v[{vROW+4*sl+2*t}:{vROW+4*sl+2*t+1}], 0 cbsz:4 abid:{4*gi+r}")
            for x in sm: a(x)
            inter(ex, [bigm(gi, 1 - cb)])
            for x in sa: a(x)
            for x in rl: a(x)
            if gi == 1: kcompute(vKPn, vTP)
            a(f"  s_waitcnt vmcnt({7 if (first and gi < 2) else 4})")
            if gi == 3: aread()
            inter(tp, rc)
            for r in range(4): rowoff(sO + r, sW + 4 * nset + r)
            for r in range(4): rowload((gi % 2) * 4 + r, sO + r)
            for x in sr: a(x)
            for r in range(4):
                a(f"  s_set_gpr_idx_on s{sW+4*gi+r}, gpr_idx(SRC2,DST)" if r == 0 else f"  s_set_gpr_idx_idx s{sW+4*gi+r}")
                for t in range(2):
                    rr = vRR + 4 * t + (r & ~1)
                    sel = "op_sel:[0,1,0] op_sel_hi:[1,1,1]" if r & 1 else "op_sel:[0,0,0] op_sel_hi:[1,0,1]"
                    for h in range(2):
                        d = vACC + 4 * t + 2 * h; tpp = vTP + 8 * r + 4 * t + 2 * h
                        a(f"  v_pk_fma_f32 v[{d}:{d+1}], v[{tpp}:{tpp+1}], v[{rr}:{rr+1}], v[{d}:{d+1}] {sel}")
            a("  s_set_gpr_idx_off")
            if gi == 3:
                a(f"  v_mov_b32 v{vKP}, v{vKPn}\n  v_mov_b32 v{vKP+1}, v{vKPn+1}\n  v_mov_b32 v{vW0}, v{vREC}")
                a(f"  v_add_u32 v{vRecA}, 256, v{vRecA}")
            a(f"  s_sub_u32 s{sG}, s{sG}, 1\n  s_cmp_eq_u32 s{sG}, 0")
            if gi == 3 and tail: a(f"  s_cbranch_scc0 {tail}")
            else: a("  s_cbranch_scc1 L2_loop_exit")
    batch(0, True, None)
    a("L2_batch1:")
    batch(1, False, None)
    batch(0, False, "L2_batch1")
    a("L2_loop_exit:")
    a("  s_waitcnt vmcnt(0) lgkmcnt(0)")
    stamp(4)
    a(f"  s_add_u32 s{sKB}, s{sKB}, s{sSTEP}\n  s_cmp_lt_u32 s{sKB}, s{sMAXL}\n  s_cbranch_scc0 L2_epilogue")
    a("L2_rezero:")
    a("  s_barrier")
    a(f"  v_lshlrev_b32 v{vT1}, 2, v0\n  v_mov_b32 v{vT2}, 0\n  ds_write_b32 v{vT1}, v{vT2} offset:{L_CNT}")
    a(f"  v_mov_b32 v{vT1}, {L_FLAG}\n  ds_write_b32 v{vT1}, v{vT2}")
    a(f"  v_mov_b32 v{vT1}, {L_FLAG+4}\n  ds_max_u32 v{vT1}, v{vLen}")
    a("  s_waitcnt lgkmcnt(0)\n  s_barrier\n  s_branch L2_pass")
    a("L2_overflow:")
    a(f"  s_mov_b32 s{sSTEP}, 1\n  s_branch L2_rezero")

    a("L2_epilogue:")
    eA = vTP; eBb = [vROW, vROW + 16]; eD = vACC
    vAa, vAb, vBa, vBx, vOut = vRecA, vA1A, vA2A, vW0, vInc1
    a(f"  v_add_u32 v{vT0}, s{sEFLW}, v{vL16}")
    for s in range(5):
        b = vACC + 8 * s; p = vROW + 4 * (s % 2)
        for i in range(4): a(f"  v_cvt_pk_bf16_f32 v{p+i}, v{b+2*i}, v{b+2*i+1}")
        a(f"  ds_write_b128 v{vT0}, v[{p}:{p+3}] offset:{s*AGG_STRIDE}")
        a("  s_nop 1")
    a(f"  v_lshrrev_b32 v{vT1}, 4, v{vLane}\n  v_bfe_u32 v{vT2}, v{vLane}, 2, 2\n  v_lshl_add_u32 v{vT2}, v{vT1}, 2, v{vT2}\n  v_and_b32 v{vT3}, 3, v{vLane}")
    a(f"  v_lshlrev_b32 v{vAa}, 3, v{vT2}\n  v_add_u32 v{vAa}, s{sEFLW}, v{vAa}")
    a(f"  v_mul_u32_u24 v{vAb}, {AGG_STRIDE}, v{vT3}\n  v_add_u32 v{vAb}, v{vAb}, v{vAa}")
    a(f"  v_and_b32 v{vBx}, 7, v{vT2}\n  v_lshlrev_b32 v{vBx}, 1, v{vBx}")
    a(f"  v_lshrrev_b32 v{vBa}, 1, v{vT3}\n  v_xor_b32 v{vBa}, v{vBa}, v{vBx}\n  v_lshlrev_b32 v{vBa}, 4, v{vBa}")
    a(f"  v_and_b32 v{vBx}, 1, v{vT3}\n  v_lshl_add_u32 v{vBa}, v{vBx}, 3, v{vBa}")
    a(f"  v_lshl_add_u32 v{vBa}, v{vT2}, 8, v{vBa}\n  v_add_u32 v{vBa}, {L_WMIX}, v{vBa}")
    a("  s_waitcnt lgkmcnt(0)")
    for tile in range(2):
        for s in range(4):
            for h in range(2):
                d = eA + tile * 16 + s * 4 + h * 2
                if tile == 0: a(f"  ds_read_b64_tr_b16 v[{d}:{d+1}], v{vAb} offset:{(32*s+16*h)*8}")
                else: a(f"  ds_read_b64_tr_b16 v[{d}:{d+1}], v{vAa} offset:{4*AGG_STRIDE+(32*s+16*h)*8}")
    vOut1 = vInc2
    a(f"  v_and_b32 v{vOut}, 1, v{vT1}\n  v_mul_u32_u24 v{vOut}, 7, v{vOut}\n  v_xor_b32 v{vOut}, s{sWAVE}, v{vOut}\n  v_lshl_add_u32 v{vOut}, v{vT1}, 3, v{vOut}")
    a(f"  v_lshlrev_b32 v{vOut}, 2, v{vOut}\n  ds_read_b32 v{vOut}, v{vOut} offset:{L_INV}")
    a(f"  s_lshl_b32 s{sT1}, s{sWAVE}, 2\n  v_mov_b32 v{vOut1}, s{sT1}\n  ds_read_b32 v{vOut1}, v{vOut1} offset:{L_INV+128}")
    a(f"  s_mul_i32 s{sT0}, s2, 625\n  s_add_u32 s{sT1}, s{sT0}, {625+15}\n  s_add_u32 s{sT0}, s{sT0}, 15")
    a(f"  s_lshr_b32 s{sT0}, s{sT0}, 4\n  s_lshr_b32 s{sT1}, s{sT1}, 4\n  s_sub_u32 s{sT1}, s{sT1}, s{sT0}\n  s_lshl_b32 s{sT0}, s{sT0}, 10")
    a(f"  v_and_b32 v{vT2}, 15, v{vLane}\n  v_lshlrev_b32 v{vT2}, 3, v{vT2}")
    a("  s_waitcnt lgkmcnt(0)")
    a(f"  v_cmp_gt_u32 s[{sM}:{sM+1}], s{sT1}, v{vOut}\n  v_cmp_gt_u32 s[{sM+2}:{sM+3}], s{sT1}, v{vOut1}")
    a(f"  v_lshl_add_u32 v{vOut}, v{vOut}, 10, v{vT2}\n  v_lshl_add_u32 v{vOut1}, v{vOut1}, 10, v{vT2}")
    a(f"  s_and_b32 s{sM+2}, s{sM+2}, 0xffff\n  s_mov_b32 s{sM+3}, 0")
    def bload(ct):
        a(f"  v_xor_b32 v{vBx}, {ct*32}, v{vBa}")
        for s in range(4):
            for h in range(2):
                d = eBb[ct % 2] + s * 4 + h * 2
                a(f"  ds_read_b64_tr_b16 v[{d}:{d+1}], v{vBx} offset:{(32*s+16*h)*256}")
    def store_ct(ct):
        for tile in range(2):
            d = eD + (ct % 2) * 8 + tile * 4; p = vT + 2 * tile
            a(f"  v_cvt_pk_bf16_f32 v{p}, v{d}, v{d+1}\n  v_cvt_pk_bf16_f32 v{p+1}, v{d+2}, v{d+3}")
        a(f"  s_mov_b64 exec, s[{sM}:{sM+1}]")
        a(f"  buffer_store_dwordx2 v[{vT}:{vT+1}], v{vOut}, s[{sOUT}:{sOUT+3}], s{sT0} offen offset:{ct*128}")
        a(f"  s_mov_b64 exec, s[{sM+2}:{sM+3}]")
        a(f"  buffer_store_dwordx2 v[{vT+2}:{vT+3}], v{vOut1}, s[{sOUT}:{sOUT+3}], s{sT0} offen offset:{ct*128}")
        a("  s_mov_b64 exec, -1")
    bload(0)
    for ct in range(8):
        if ct + 1 < 8:
            bload(ct + 1)
            a("  s_waitcnt lgkmcnt(8)")
        else:
            a("  s_waitcnt lgkmcnt(0)")
        for tile in range(2):
            d = eD + (ct % 2) * 8 + tile * 4
            for s in range(4):
                c = "0" if s == 0 else f"v[{d}:{d+3}]"
                A_ = eA + tile * 16 + s * 4; B_ = eBb[ct % 2] + s * 4
                a(f"  v_mfma_f32_16x16x32_bf16 v[{d}:{d+3}], v[{A_}:{A_+3}], v[{B_}:{B_+3}], {c}")
        if ct > 0: store_ct(ct - 1)
    a("  s_nop 7")
    store_ct(7)
    if stamps:
        stamp(5)
        a("  s_waitcnt lgkmcnt(0)")
        ws0, ws1 = (6, 7) if PACK else (100, 101)
        a(f"  s_mov_b32 s{sOFFSRD}, s{ws0}\n  s_mov_b32 s{sOFFSRD+1}, s{ws1}\n  s_mov_b32 s{sOFFSRD+2}, 0x10000000\n  s_mov_b32 s{sOFFSRD+3}, 0x20000")
        a(f"  s_lshl_b32 s{sT0}, s2, 3\n  s_add_u32 s{sT0}, s{sT0}, s{sWAVE}\n  s_mul_i32 s{sT0}, s{sT0}, 64\n  s_add_u32 s{sT0}, s{sT0}, {STAMP_OFF}")
        a(f"  v_mov_b32 v{vT+2}, 0")
        for i in range(6):
            a(f"  v_mov_b32 v{vT+0}, s{sST+2*i}\n  v_mov_b32 v{vT+1}, s{sST+2*i+1}")
            a(f"  buffer_store_dwordx2 v[{vT}:{vT+1}], v{vT+2}, s[{sOFFSRD}:{sOFFSRD+3}], s{sT0} offen offset:{8*i}")
            a("  s_waitcnt vmcnt(0)")
    a("L2_end:")
    a("  s_endpgm")
    return NV, NS

def build(opt):
    a = A()
    a(f"; @launch kernel={K1} grid=({NCH},1,1) block=({CH},1,1) lds={max(K1_LDS if opt.get('pack', 1) else 2048, opt.get('lds1', 0))}")
    a(f"; @launch kernel={K2} grid=({NB},1,1) block=(512,1,1) lds={LDS2}")
    a('.amdgcn_target "amdgcn-amd-amdhsa--gfx950"')
    a(".text")
    gen_k1(a, opt)
    nv, ns = gen_k2(a, opt)
    a('.section .rodata,"a"\n.p2align 6')
    a(kd(K1, 48, 64))
    a(".p2align 6")
    a(kd(K2, nv, ns))
    return a.text(), nv

if __name__ == "__main__":
    out = sys.argv[1]
    opt = {}
    for x in sys.argv[2:]:
        k, _, val = x.partition("=")
        opt[k] = int(val) if val else True
    t, nv = build(opt)
    open(out, "w").write(t)
    print("wrote", out, "LDS2 =", LDS2, "NV =", nv)
```

```python
import sys

N, E, C = 10000, 160000, 128
NB, NPB = 256, 40
NCH, CH = 250, 640
OFFS = 0
RECS = 0x40000
EFS = RECS + E * 16
WS_USED = EFS + E * 32
STAMP_OFF, STAMP1_OFF = 0x4000000, 0x4100000
K1 = "bin_edges_kernel"
K2 = "gather_scatter__tensor_product_equiv_tfn__graph_kernel"

class A:
    def __init__(self): self.L = []
    def __call__(self, s):
        for line in s.strip("\n").split("\n"): self.L.append(line)
    def text(self): return "\n".join(self.L) + "\n"

class V:
    def __init__(self, start=1): self.n = start
    def get(self, cnt=1, align=1):
        self.n = (self.n + align - 1) // align * align
        r = self.n; self.n += cnt
        return r

def srd(a, r, lo, size):
    a(f"  s_mov_b32 s{r}, s{lo}\n  s_mov_b32 s{r+1}, s{lo+1}\n  s_mov_b32 s{r+2}, {size}\n  s_mov_b32 s{r+3}, 0x20000")

def wave_scan(a, v, op="v_add_u32"):
    for ctl in ("row_shr:1", "row_shr:2", "row_shr:4", "row_shr:8"):
        a(f"  s_nop 1\n  {op}_dpp v{v}, v{v}, v{v} {ctl} row_mask:0xf bank_mask:0xf bound_ctrl:0")
    a(f"  s_nop 1\n  {op}_dpp v{v}, v{v}, v{v} row_bcast:15 row_mask:0xa bank_mask:0xf")
    a(f"  s_nop 1\n  {op}_dpp v{v}, v{v}, v{v} row_bcast:31 row_mask:0xc bank_mask:0xf")

def hwslot(a, dst, tmp):
    a(f"  s_getreg_b32 s{dst}, hwreg(HW_REG_HW_ID, 13, 2)")
    a(f"  s_getreg_b32 s{tmp}, hwreg(HW_REG_HW_ID, 8, 4)")
    a(f"  s_mul_i32 s{dst}, s{dst}, 9\n  s_add_u32 s{dst}, s{dst}, s{tmp}")

def kd(name, nv, ns):
    return f""".amdhsa_kernel {name}
  .amdhsa_next_free_vgpr {nv}
  .amdhsa_next_free_sgpr {ns}
  .amdhsa_accum_offset {min((nv + 3) // 4 * 4, 256)}
  .amdhsa_group_segment_fixed_size 0
  .amdhsa_kernarg_size 88
  .amdhsa_user_sgpr_count 2
  .amdhsa_user_sgpr_kernarg_segment_ptr 1
  .amdhsa_system_sgpr_workgroup_id_x 1
  .amdhsa_float_denorm_mode_32 3
.end_amdhsa_kernel"""

K1_CNT, K1_BASE, K1_INV, K1_HDR, K1_EF = 0, 1024, 2048, 4608, 14848
K1_LDS = K1_EF + CH * 32

def gen_k1(a, opt):
    P1 = opt.get("p1", 0)
    stamps = opt.get("stamps", False)
    def stamp(i):
        if stamps: a(f"  s_memrealtime s[{48+2*i}:{48+2*i+1}]")
    sSRC, sDST, sY, sWS, sX, sEF = 16, 20, 24, 28, 36, 44
    a(f".globl {K1}\n.p2align 8\n.type {K1},@function\n{K1}:")
    a(f"  s_cmp_ge_u32 s2, {NCH}\n  s_cbranch_scc1 L1_end")
    stamp(0)
    a("  s_load_dwordx4 s[4:7], s[0:1], 8")
    a("  s_load_dwordx4 s[8:11], s[0:1], 24")
    a("  s_load_dwordx2 s[40:41], s[0:1], 80")
    a("  s_load_dwordx2 s[32:33], s[0:1], 0")
    a("  v_lshlrev_b32 v1, 2, v0\n  v_mov_b32 v2, 0\n  v_lshrrev_b32 v21, 6, v0")
    a("  v_cmp_gt_u32 vcc, 256, v0\n  s_and_saveexec_b64 s[12:13], vcc")
    a(f"  ds_write_b32 v1, v2 offset:{K1_CNT}")
    a("  s_mov_b64 exec, s[12:13]")
    a(f"  s_mul_i32 s14, s2, {CH}")
    a("  v_add_u32 v3, s14, v0")
    a("  v_readfirstlane_b32 s15, v21")
    a("  v_lshlrev_b32 v4, 2, v3\n  v_lshlrev_b32 v5, 3, v3")
    a("  v_and_b32 v22, 63, v0\n  v_lshlrev_b32 v22, 4, v22")
    a("  s_waitcnt lgkmcnt(0)")
    srd(a, sDST, 6, E * 4)
    a(f"  buffer_load_dword v6, v4, s[{sDST}:{sDST+3}], 0 offen")
    srd(a, sSRC, 4, E * 4)
    a(f"  buffer_load_dword v7, v4, s[{sSRC}:{sSRC+3}], 0 offen")
    srd(a, sY, 8, E * 8)
    a(f"  buffer_load_dwordx2 v[10:11], v5, s[{sY}:{sY+3}], 0 offen")
    srd(a, sWS, 40, WS_USED)
    srd(a, sEF, 10, E * 32)
    srd(a, sX, 32, N * 1024)
    a(f"  s_lshl_b32 s12, s15, 11\n  s_mul_i32 s13, s2, {CH*32}\n  s_add_u32 s13, s13, s12")
    def efdma():
        for i in range(2):
            a(f"  s_add_u32 m0, s12, {K1_EF + 1024*i}")
            a("  s_nop 0")
            a(f"  buffer_load_dwordx4 v22, s[{sEF}:{sEF+3}], s13 offen offset:0 lds")
            if i == 0: a("  s_add_u32 s13, s13, 1024")
    PACK = opt.get("pack", 1)
    if not PACK:
        def efdma(): pass
    if not opt.get("k1late"): efdma()
    PSTR = 360
    if P1 and opt.get("pfall"):
        PSTR = 2500
        a(f"  s_mul_i32 s34, s2, 10\n  s_add_u32 s34, s34, s15\n  s_add_u32 s34, s34, {2500*(P1-1)}\n  s_lshl_b32 s34, s34, 10")
    elif P1:
        hwslot(a, 34, 35)
        a(f"  s_mul_i32 s34, s34, 10\n  s_add_u32 s34, s34, s15\n  s_add_u32 s34, s34, {360*(P1-1)}\n  s_lshl_b32 s34, s34, 10")
    PT = 1 if opt.get("pretouch") else 0
    if PT:
        a("  s_mov_b64 exec, 1")
        a(f"  buffer_load_dword v44, v22, s[{sX}:{sX+3}], s34 offen")
        a("  s_mov_b64 exec, -1")
    if opt.get("codepf"):
        nk = opt.get("codepf")
        a(f"  s_lshr_b32 s34, s2, 3\n  s_cmp_ge_u32 s34, {nk}\n  s_cbranch_scc1 L1_nocode\n  s_cmp_lg_u32 s15, 9\n  s_cbranch_scc1 L1_nocode")
        a("  s_getpc_b64 s[62:63]")
        a("L1_pc:")
        a(f"  s_add_u32 s62, s62, {K2}-L1_pc\n  s_addc_u32 s63, s63, 0")
        a("  s_lshl_b32 s34, s34, 10\n  v_add_u32 v23, s34, v22")
        a("  global_load_dwordx4 v[44:47], v23, s[62:63]")
        a("L1_nocode:")
    TLBW = opt.get("tlbw", 0)
    if TLBW:
        a("  s_load_dwordx2 s[62:63], s[0:1], 64")
        a("  s_lshr_b32 s34, s2, 3\n  s_mul_i32 s34, s34, 5\n  v_and_b32 v23, 63, v0\n  v_add_u32 v23, s34, v23\n  v_lshlrev_b32 v23, 16, v23")
        a("  s_waitcnt lgkmcnt(0)")
        srd(a, 56, 62, N * 1024)
        a("  s_cmp_lg_u32 s15, 1\n  s_cbranch_scc1 L1_notlb")
        a("  s_mov_b64 exec, 0x1f")
        a(f"  buffer_load_dword v44, v23, s[{sX}:{sX+3}], 0 offen")
        a(f"  buffer_load_dword v45, v23, s[{sEF}:{sEF+3}], 0 offen")
        a(f"  buffer_load_dword v46, v23, s[56:59], 0 offen")
        a("  s_mov_b64 exec, -1")
        a("  s_waitcnt vmcnt(0)")
        a("L1_notlb:")
    a("  s_barrier")
    nd = 0 if (opt.get("k1late") or not PACK) else 2
    ND = 2 if PACK else 0
    a(f"  s_waitcnt vmcnt({2+nd+PT})")
    stamp(1)
    if opt.get("k1late"): efdma()
    PFPOS = opt.get("pfpos", 0)
    def pf1():
        for k in range(P1):
            a(f"  buffer_load_dwordx4 v[40:43], v22, s[{sX}:{sX+3}], s34 offen")
            if k + 1 < P1: a(f"  s_sub_u32 s34, s34, {PSTR*1024}")
    if PFPOS == 0: pf1()
    P1a = P1 if PFPOS == 0 else 0
    a("  s_mov_b32 s35, 109951163\n  v_mul_hi_u32 v12, s35, v6\n  v_min_u32 v12, 255, v12")
    a("  v_and_b32 v16, 7, v12\n  v_lshlrev_b32 v16, 7, v16")
    a("  v_lshrrev_b32 v17, 3, v12\n  v_lshl_add_u32 v16, v17, 2, v16")
    a("  v_mov_b32 v17, 1")
    a(f"  ds_add_rtn_u32 v18, v16, v17 offset:{K1_CNT}")
    a("  v_mul_u32_u24 v13, 625, v12\n  v_add_u32 v13, 15, v13\n  v_lshrrev_b32 v13, 4, v13\n  v_sub_u32 v13, v6, v13")
    a("  v_mov_b32 v14, v13")
    a(f"  s_waitcnt vmcnt({1 + ND + P1a + PT})")
    a("  v_lshl_or_b32 v8, v7, 10, v14")
    if PFPOS == 1: pf1()
    a("  s_waitcnt lgkmcnt(0)")
    a("  s_barrier")
    stamp(2)
    if PFPOS == 2: pf1()
    a("  s_cmp_lg_u32 s15, 0\n  s_cbranch_scc1 L1_noscan")
    a(f"  ds_read_b128 v[24:27], v22 offset:{K1_CNT}")
    a("  s_waitcnt lgkmcnt(0)")
    a("  v_add_u32 v28, v24, v25\n  v_add_u32 v29, v28, v26\n  v_add_u32 v30, v29, v27\n  v_mov_b32 v31, v30")
    wave_scan(a, 31)
    a("  v_sub_u32 v32, v31, v30\n  v_add_u32 v33, v32, v24\n  v_add_u32 v34, v32, v28\n  v_add_u32 v35, v32, v29")
    a(f"  ds_write_b128 v22, v[32:35] offset:{K1_BASE}")
    a("  v_lshl_or_b32 v36, v24, 16, v32\n  v_lshl_or_b32 v37, v25, 16, v33\n  v_lshl_or_b32 v38, v26, 16, v34\n  v_lshl_or_b32 v39, v27, 16, v35")
    a("  s_lshl_b32 s12, s2, 10")
    a(f"  buffer_store_dwordx4 v[36:39], v22, s[{sWS}:{sWS+3}], s12 offen offset:{OFFS} { {0: '', 1: 'nt', 2: 'sc1', 3: 'sc0 sc1'}[opt.get('kpol', 0)] }")
    a("  s_waitcnt lgkmcnt(0)")
    a("L1_noscan:")
    a("  s_barrier")
    stamp(3)
    a(f"  ds_read_b32 v19, v16 offset:{K1_BASE}")
    a("  s_waitcnt lgkmcnt(0)")
    a("  v_add_u32 v19, v19, v18")
    KPOL = {0: "", 1: "nt", 2: "sc1", 3: "sc0 sc1"}[opt.get("kpol", 0)]
    if not PACK and not opt.get("kstage"):
        a("  v_lshlrev_b32 v9, 5, v3\n  v_add_u32 v19, s14, v19\n  v_lshlrev_b32 v19, 4, v19")
        a(f"  s_mov_b32 s12, {RECS}")
        a("  s_cmp_lg_u32 s15, 0\n  s_cbranch_scc1 L1_u1")
        a(f"  s_waitcnt vmcnt({P1+1})\n  s_branch L1_u2")
        a("L1_u1:")
        a(f"  s_waitcnt vmcnt({P1})")
        a("L1_u2:")
        a(f"  buffer_store_dwordx4 v[8:11], v19, s[{sWS}:{sWS+3}], s12 offen")
        a("  s_branch L1_fin")
    if not PACK and opt.get("kstage"):
        a("  v_lshlrev_b32 v9, 5, v3\n  v_lshlrev_b32 v20, 4, v19")
        a("  s_cmp_lg_u32 s15, 0\n  s_cbranch_scc1 L1_u1")
        a(f"  s_waitcnt vmcnt({P1+1})\n  s_branch L1_u2")
        a("L1_u1:")
        a(f"  s_waitcnt vmcnt({P1})")
        a("L1_u2:")
        a(f"  ds_write_b128 v20, v[8:11] offset:2048")
        a("  s_waitcnt lgkmcnt(0)\n  s_barrier")
        a("  v_lshlrev_b32 v20, 4, v0")
        a(f"  ds_read_b128 v[8:11], v20 offset:2048")
        a(f"  s_lshl_b32 s12, s14, 4\n  s_add_u32 s12, s12, {RECS}")
        a("  s_waitcnt lgkmcnt(0)")
        a(f"  buffer_store_dwordx4 v[8:11], v20, s[{sWS}:{sWS+3}], s12 offen {KPOL}")
        a("  s_branch L1_fin")
    a("  v_add_u32 v9, s14, v19\n  v_lshlrev_b32 v9, 5, v9")
    a("  v_lshlrev_b32 v20, 4, v19\n  v_lshlrev_b32 v19, 2, v19")
    a(f"  ds_write_b32 v19, v0 offset:{K1_INV}")
    a("  s_cmp_lg_u32 s15, 0\n  s_cbranch_scc1 L1_w1")
    a(f"  s_waitcnt vmcnt({P1+1})\n  s_branch L1_w2")
    a("L1_w1:")
    a(f"  s_waitcnt vmcnt({P1})")
    a("L1_w2:")
    a(f"  ds_write_b128 v20, v[8:11] offset:{K1_HDR}")
    a("  s_waitcnt lgkmcnt(0)")
    a("  s_barrier")
    a("  v_lshlrev_b32 v20, 4, v0")
    a("  v_lshrrev_b32 v19, 1, v0\n  v_lshlrev_b32 v19, 2, v19")
    a(f"  ds_read_b32 v24, v19 offset:{K1_INV}")
    a(f"  ds_read_b32 v25, v19 offset:{K1_INV + 1280}")
    a(f"  ds_read_b128 v[8:11], v20 offset:{K1_HDR}")
    a("  v_and_b32 v19, 1, v0\n  v_lshlrev_b32 v19, 4, v19")
    a(f"  s_lshl_b32 s12, s14, 4\n  s_add_u32 s12, s12, {RECS}")
    a(f"  s_lshl_b32 s13, s14, 5\n  s_add_u32 s13, s13, {EFS}")
    a("  s_waitcnt lgkmcnt(1)")
    a("  v_lshl_add_u32 v24, v24, 5, v19\n  v_lshl_add_u32 v25, v25, 5, v19")
    a(f"  ds_read_b128 v[28:31], v24 offset:{K1_EF}")
    a(f"  ds_read_b128 v[32:35], v25 offset:{K1_EF}")
    a("  s_waitcnt lgkmcnt(2)")
    a(f"  buffer_store_dwordx4 v[8:11], v20, s[{sWS}:{sWS+3}], s12 offen")
    a("  s_waitcnt lgkmcnt(1)")
    a(f"  buffer_store_dwordx4 v[28:31], v20, s[{sWS}:{sWS+3}], s13 offen")
    a(f"  s_add_u32 s13, s13, {CH*16}")
    a("  s_waitcnt lgkmcnt(0)")
    a(f"  buffer_store_dwordx4 v[32:35], v20, s[{sWS}:{sWS+3}], s13 offen")
    a("L1_fin:")
    if stamps:
        stamp(4)
        a("  s_waitcnt vmcnt(0)")
        stamp(5)
        a("  s_waitcnt lgkmcnt(0)")
        a("  s_mov_b32 s44, s40\n  s_mov_b32 s45, s41\n  s_mov_b32 s46, 0x10000000\n  s_mov_b32 s47, 0x20000")
        a(f"  s_mul_i32 s12, s2, 10\n  s_add_u32 s12, s12, s15\n  s_mul_i32 s12, s12, 64\n  s_add_u32 s12, s12, {STAMP1_OFF}")
        a("  v_mov_b32 v2, 0")
        for i in range(6):
            a(f"  v_mov_b32 v20, s{48+2*i}\n  v_mov_b32 v21, s{48+2*i+1}")
            a(f"  buffer_store_dwordx2 v[20:21], v2, s[44:47], s12 offen offset:{8*i}")
            a("  s_waitcnt vmcnt(0)")
    a("L1_end:")
    a("  s_endpgm")

L_CNT = 0
L_FLAG = 2048
L_ZERO = L_FLAG + 16
L_DEG = L_FLAG + 128
L_RANK = L_DEG + 256
L_INV = L_RANK + 256
CAPFILL = 256
CAPW = CAPFILL + 32
L_LIST = 4096
L_WMIX = L_LIST + 8 * CAPW * 16
L_EFL = L_WMIX + 128 * 256
AGG_STRIDE = 1088
L_WRAD = L_EFL + 8 * CAPW * 32
LDS2 = L_WRAD + 4096 + 256
DUMMY_W0 = 0x7FFFFC00 | 40
DUMMY_W1 = 0x7FFFFFE0

def gen_k2(a, opt):
    stamps = opt.get("stamps", False)
    R1 = 360 * opt.get("p1", 0) if not opt.get("pfall") else 0
    NR = 8
    OPOL = {0: "", 1: "nt", 2: "sc1", 3: "sc0 sc1", 4: "sc0 sc1 nt", 5: "sc1 nt"}[opt.get("opol", 0)]
    EFPOL = {0: "", 1: "nt", 2: "sc1", 3: "sc0 sc1", 4: "sc0 sc1 nt", 5: "sc1 nt", 6: "sc0"}[opt.get("efpol", 0)]
    v = V(1)
    vLane = v.get(); vL16 = v.get(); vT0 = v.get(); vT1 = v.get(); vT2 = v.get(); vT3 = v.get()
    vLen = v.get(); vRecOff = v.get(); vJ = v.get()
    vRecA = v.get(); vA1A = v.get(); vA2A = v.get(); vInc1 = v.get(); vInc2 = v.get(); vW0 = v.get()
    vREC = v.get(4, 4)
    vKP = v.get(2, 2); vKPn = v.get(2, 2)
    vA = v.get(8, 4)
    vCG = v.get(8, 2)
    vWB = v.get(16, 4)
    vRR = v.get(8, 2); vT = v.get(8, 2)
    vZZ = v.get(64, 4)
    vACC = v.get(48, 4)
    vROW = v.get(32, 4)
    vTP = v.get(32, 4)
    NV = v.n
    assert NV <= 256, NV
    pREC = vROW; pKEY = vTP; pRANK = vTP + 8; pBASE = vTP + 16
    pW = vZZ
    pM = vZZ + 36
    vOL = vTP + 24; vRem = vTP + 25; vD0 = vTP + 26; vD1 = vTP + 27
    vPF = vZZ + 32
    sX, sWS, sOUT, sTMP = 8, 12, 20, 24
    sEFLW = 16; sLISTW = 17; sPF = 18; sNODE = 19
    sWAVE, sN, sG, sKB, sSTEP, sMAXL, sT0, sT1, sFLAG = 28, 29, 30, 31, 32, 33, 35, 36, 37
    sNLOG = 38; sM = 40; sW = 56; sO = 72; sSAVE = 76; sP1 = 78; sP2 = 79; sOFFSRD = 80; sST = 88
    NS = 102
    FINE = opt.get("fine", 0)
    def fstamp(i):
        if stamps and FINE == 1: a(f"  s_memrealtime s[{sST+2*i}:{sST+2*i+1}]")
    def gstamp(i):
        if stamps and FINE == 2: a(f"  s_memrealtime s[{sST+2*i}:{sST+2*i+1}]")
    def stamp(i):
        if stamps and FINE: return
        if stamps:
            if opt.get("clk") and i in (1, 2): return
            a(f"  s_memrealtime s[{sST+2*i}:{sST+2*i+1}]")
            if opt.get("clk") and i in (3, 4): a(f"  s_memtime s[{sST+2*(i-2)}:{sST+2*(i-2)+1}]")

    a(f".globl {K2}\n.p2align 8\n.type {K2},@function\n{K2}:")
    a(f"  s_cmp_ge_u32 s2, {NB}\n  s_cbranch_scc1 L2_end")
    stamp(0)
    PACK = opt.get("pack", 1)
    PFA = opt.get("pfa", 0); PFB = opt.get("pfb", 0)
    a("  s_load_dwordx2 s[6:7], s[0:1], 80")
    a("  s_load_dwordx2 s[4:5], s[0:1], 0")
    a("  s_load_dwordx4 s[84:87], s[0:1], 40")
    a("  s_load_dwordx4 s[40:43], s[0:1], 56")
    if not PACK: a("  s_load_dwordx2 s[44:45], s[0:1], 32")
    a(f"  v_and_b32 v{vLane}, 63, v0\n  v_lshrrev_b32 v{vT0}, 6, v0\n  v_lshlrev_b32 v{vL16}, 4, v{vLane}")
    a(f"  v_readfirstlane_b32 s{sWAVE}, v{vT0}")
    a(f"  v_lshlrev_b32 v{vT1}, 2, v0\n  v_mov_b32 v{vT2}, 0")
    a(f"  ds_write_b32 v{vT1}, v{vT2} offset:{L_CNT}")
    a(f"  v_cmp_gt_u32 vcc, 16, v0\n  s_and_saveexec_b64 s[{sSAVE}:{sSAVE+1}], vcc")
    a(f"  ds_write_b32 v{vT1}, v{vT2} offset:{L_FLAG}")
    a(f"  s_mov_b64 exec, s[{sSAVE}:{sSAVE+1}]")
    a(f"  v_cmp_gt_u32 vcc, 64, v0\n  s_and_saveexec_b64 s[{sSAVE}:{sSAVE+1}], vcc")
    a(f"  ds_write_b32 v{vT1}, v0 offset:{L_DEG}\n  ds_write_b32 v{vT1}, v{vT2} offset:{L_RANK}")
    a(f"  s_mov_b64 exec, s[{sSAVE}:{sSAVE+1}]")
    a(f"  v_lshrrev_b32 v{vT0}, 1, v0\n  v_and_b32 v{vJ}, 1, v0")
    a(f"  s_and_b32 s{sT0}, s2, 7\n  s_lshl_b32 s{sT0}, s{sT0}, 5\n  s_lshr_b32 s{sT1}, s2, 3\n  s_add_u32 s{sT0}, s{sT0}, s{sT1}\n  s_lshl_b32 s{sT0}, s{sT0}, 2")
    a(f"  v_lshlrev_b32 v{vT3}, 10, v{vT0}\n  v_mul_u32_u24 v{vRecOff}, {CH}, v{vT0}")
    a(f"  s_mul_i32 s{sLISTW}, s{sWAVE}, {CAPW*16}\n  s_add_u32 s{sLISTW}, s{sLISTW}, {L_LIST}")
    a(f"  s_mul_i32 s{sEFLW}, s{sWAVE}, {CAPW*32}\n  s_add_u32 s{sEFLW}, s{sEFLW}, {L_EFL}")
    if PFA + PFB:
        hwslot(a, sPF, sT1)
        a(f"  s_lshl_b32 s{sPF}, s{sPF}, 3\n  s_add_u32 s{sPF}, s{sPF}, s{sWAVE}\n  s_add_u32 s{sPF}, s{sPF}, {R1}\n  s_lshl_b32 s{sPF}, s{sPF}, 10")
    a("  s_waitcnt lgkmcnt(0)")
    srd(a, sOFFSRD, 6, NCH * 1024)
    a(f"  buffer_load_dword v{vOL}, v{vT3}, s[{sOFFSRD}:{sOFFSRD+3}], s{sT0} offen")
    srd(a, sTMP, 84, 16 * C * 2)
    a(f"  s_lshl_b32 s{sT1}, s{sWAVE}, 10\n  s_add_u32 m0, s{sT1}, {L_WRAD}")
    a(f"  s_cmp_ge_u32 s{sWAVE}, 4\n  s_cbranch_scc0 L2_aux_go")
    srd(a, sTMP, 86, 128)
    a(f"  s_mov_b32 s{sT1}, 0\n  s_mov_b32 m0, {L_WRAD+4096}\n  s_mov_b64 exec, 0xff")
    a(f"  s_cmp_eq_u32 s{sWAVE}, 4\n  s_cbranch_scc1 L2_aux_go")
    a(f"  s_movk_i32 s{sT1}, 0x1000")
    a(f"  s_mov_b32 m0, {L_WRAD+4096+128}")
    a("L2_aux_go:")
    a("  s_nop 0")
    a(f"  buffer_load_dwordx4 v{vL16}, s[{sTMP}:{sTMP+3}], s{sT1} offen lds")
    a("  s_mov_b64 exec, -1")
    srd(a, sTMP, 40, C * C * 2)
    a(f"  v_lshlrev_b32 v{vD0}, 4, v0")
    for i in range(4):
        a(f"  s_movk_i32 s{sT1}, {8192*i}")
        a(f"  buffer_load_dwordx4 v[{pM+4*i}:{pM+4*i+3}], v{vD0}, s[{sTMP}:{sTMP+3}], s{sT1} offen")
    srd(a, sX, 4, N * 1024)
    def warm(n):
        for k in range(n):
            a(f"  buffer_load_dwordx4 v[{vPF}:{vPF+3}], v{vL16}, s[{sX}:{sX+3}], s{sPF} offen")
            a(f"  s_add_u32 s{sPF}, s{sPF}, {288*1024}")
    warm(PFA)
    srd(a, sWS, 6, WS_USED)
    srd(a, sOUT, 42, N * 1024)
    sFE = sWS
    if not PACK:
        sFE = 4
        if stamps: a("  s_mov_b32 s100, s6\n  s_mov_b32 s101, s7")
        srd(a, sFE, 44, E * 32)
    a(f"  s_mov_b32 s{sKB}, 0\n  s_mov_b32 s{sSTEP}, {2*NR}")
    for r in range(NR):
        a(f"  v_mov_b32 v{pREC+4*r+1}, -1")
    for r in range(48):
        a(f"  v_mov_b32 v{vACC+r}, 0")
    a(f"  s_mov_b32 s{sNLOG}, 0xbfb8aa3b\n  s_mov_b32 s{sNLOG+1}, 0xbfb8aa3b")
    a(f"  s_mov_b32 s{sP1}, 0x05040100\n  s_mov_b32 s{sP2}, 0x07060302")
    a("  s_barrier")
    a(f"  s_waitcnt vmcnt({5 + PFA})")
    stamp(1)
    a(f"  v_lshrrev_b32 v{vLen}, 16, v{vOL}\n  v_and_b32 v{vOL}, 0xffff, v{vOL}")
    a(f"  v_add3_u32 v{vRecOff}, v{vRecOff}, v{vOL}, v{vJ}\n  v_lshlrev_b32 v{vRecOff}, 4, v{vRecOff}")

    STRAIGHT = opt.get("straight", 0)
    def guard(r, label):
        if r >= STRAIGHT: a(f"  s_cmp_eq_u64 s[{sM+2*r}:{sM+2*r+1}], 0\n  s_cbranch_scc1 {label}")
    def rec_masks():
        a(f"  s_add_u32 s{sT0}, s{sKB}, s{sSTEP}")
        a(f"  v_min_u32 v{vRem}, s{sT0}, v{vLen}\n  v_subrev_u32 v{vRem}, s{sKB}, v{vRem}\n  v_sub_u32 v{vRem}, v{vRem}, v{vJ}")
        a(f"  s_lshl_b32 s{sT0}, s{sKB}, 4\n  s_add_u32 s{sT0}, s{sT0}, {RECS}")
        for r in range(NR):
            a(f"  v_cmp_lt_i32 s[{sM+2*r}:{sM+2*r+1}], {2*r}, v{vRem}")
        a("  s_nop 3")
    def rec_load(r):
        a(f"  s_mov_b64 exec, s[{sM+2*r}:{sM+2*r+1}]")
        a(f"  buffer_load_dwordx4 v[{pREC+4*r}:{pREC+4*r+3}], v{vRecOff}, s[{sWS}:{sWS+3}], s{sT0} offen offset:{32*r}")

    rec_masks()
    for r in range(NR):
        a(f"  s_cmp_eq_u64 s[{sM+2*r}:{sM+2*r+1}], 0\n  s_cbranch_scc1 L2_first_done")
        rec_load(r)
    NY = PFB
    a("L2_first_done:")
    a("  s_mov_b64 exec, -1")
    warm(PFB)
    a("L2_stage:")
    a(f"  v_cmp_lt_u32 vcc, {2*NR}, v{vLen}\n  s_and_saveexec_b64 s[{sSAVE}:{sSAVE+1}], vcc")
    a(f"  s_cbranch_execz L2_nomax")
    a(f"  v_mov_b32 v{vT1}, {L_FLAG+4}\n  ds_max_u32 v{vT1}, v{vLen}")
    a(f"L2_nomax:")
    a(f"  s_mov_b64 exec, s[{sSAVE}:{sSAVE+1}]")
    a(f"  s_waitcnt vmcnt({NY})")
    stamp(2)
    fstamp(0)
    def touch(tag):
        for r in range(NR):
            guard(r, f"L2_touch_done{tag}")
            a(f"  s_mov_b64 exec, s[{sM+2*r}:{sM+2*r+1}]")
            a(f"  buffer_load_dword v{vPF}, v{pREC+4*r+1}, s[{sFE}:{sFE+3}], 0 offen")
        a(f"L2_touch_done{tag}:")
        a("  s_mov_b64 exec, -1")
    TOUCH = opt.get("touch", 0) if not PACK else 0
    if TOUCH == 1: touch(1)
    a(f"  v_mov_b32 v{vT3}, 64")
    for r in range(NR):
        guard(r, f"L2_deg_done")
        a(f"  s_mov_b64 exec, s[{sM+2*r}:{sM+2*r+1}]")
        a(f"  v_and_b32 v{vT0}, 63, v{pREC+4*r}\n  v_lshlrev_b32 v{vT0}, 2, v{vT0}")
        a(f"  ds_add_u32 v{vT0}, v{vT3} offset:{L_DEG}")
    a("L2_deg_done:")
    a("  s_mov_b64 exec, -1")
    a(f"  v_lshrrev_b32 v{vT0}, 4, v0\n  v_and_b32 v{vT1}, 7, v{vT0}\n  v_lshlrev_b32 v{vT1}, 1, v{vT1}")
    a(f"  v_bfe_u32 v{vT2}, v0, 2, 2\n  v_lshlrev_b32 v{vT2}, 2, v{vT2}\n  v_bfe_u32 v{vD1}, v0, 1, 1\n  v_add_u32 v{vT2}, v{vT2}, v{vD1}")
    a(f"  v_xor_b32 v{vT2}, v{vT2}, v{vT1}\n  v_lshlrev_b32 v{vT2}, 4, v{vT2}\n  v_and_b32 v{vD1}, 1, v0\n  v_lshl_add_u32 v{vT2}, v{vD1}, 3, v{vT2}")
    a(f"  v_lshl_add_u32 v{vT2}, v{vT0}, 8, v{vT2}\n  v_add_u32 v{vT2}, {L_WMIX}, v{vT2}\n  v_xor_b32 v{vT1}, 32, v{vT2}")
    for i in range(4):
        m = pM + 4 * i; e = vZZ + 16 + 4 * (i % 2)
        a(f"  v_perm_b32 v{e}, v{m+1}, v{m}, s{sP1}\n  v_perm_b32 v{e+1}, v{m+3}, v{m+2}, s{sP1}")
        a(f"  v_perm_b32 v{e+2}, v{m+1}, v{m}, s{sP2}\n  v_perm_b32 v{e+3}, v{m+3}, v{m+2}, s{sP2}")
        a(f"  ds_write_b64 v{vT2}, v[{e}:{e+1}] offset:{8192*i}\n  ds_write_b64 v{vT1}, v[{e+2}:{e+3}] offset:{8192*i}")
    a("  s_waitcnt lgkmcnt(0)\n  s_barrier")
    fstamp(1)
    a(f"  v_lshlrev_b32 v{vT0}, 2, v{vLane}\n  s_mul_i32 s{sT0}, s{sWAVE}, 20\n  v_mov_b32 v{vT1}, s{sT0}")
    a(f"  ds_read_b32 v{vT2}, v{vT0} offset:{L_DEG}")
    for j in range(5):
        a(f"  ds_read_b32 v{pKEY+j}, v{vT1} offset:{L_DEG+4*j}")
    a(f"  v_mov_b32 v{vT3}, 0")
    a("  s_waitcnt lgkmcnt(0)")
    for j in range(5):
        a(f"  v_cmp_gt_u32 s[{sW+2*j}:{sW+2*j+1}], v{pKEY+j}, v{vT2}")
    a("  s_nop 1")
    for j in range(5):
        a(f"  v_addc_co_u32 v{vT3}, vcc, 0, v{vT3}, s[{sW+2*j}:{sW+2*j+1}]")
    a(f"  ds_add_u32 v{vT0}, v{vT3} offset:{L_RANK}")
    a("  s_waitcnt lgkmcnt(0)\n  s_barrier")
    fstamp(2)
    a(f"  s_cmp_lg_u32 s{sWAVE}, 0\n  s_cbranch_scc1 L2_pass_keys")
    a(f"  ds_read_b32 v{vT2}, v{vT0} offset:{L_RANK}")
    a(f"  v_cmp_gt_u32 vcc, {NPB}, v{vLane}\n  s_and_saveexec_b64 s[{sSAVE}:{sSAVE+1}], vcc")
    a(f"  s_waitcnt lgkmcnt(0)\n  v_lshlrev_b32 v{vT2}, 2, v{vT2}")
    a(f"  ds_write_b32 v{vT2}, v{vLane} offset:{L_INV}")
    a(f"  s_mov_b64 exec, s[{sSAVE}:{sSAVE+1}]")
    a("  s_branch L2_pass_keys")

    a("L2_pass:")
    rec_masks()
    for r in range(NR):
        a(f"  s_cmp_eq_u64 s[{sM+2*r}:{sM+2*r+1}], 0\n  s_cbranch_scc1 L2_ld_done")
        rec_load(r)
    a("L2_ld_done:")
    a("  s_mov_b64 exec, -1\n  s_waitcnt vmcnt(0)")
    a("L2_pass_keys:")
    for r in range(NR):
        guard(r, f"L2_rk_done")
        a(f"  s_mov_b64 exec, s[{sM+2*r}:{sM+2*r+1}]")
        a(f"  v_and_b32 v{vT0}, 63, v{pREC+4*r}\n  v_lshlrev_b32 v{vT0}, 2, v{vT0}")
        a(f"  ds_read_b32 v{pBASE+r}, v{vT0} offset:{L_RANK}")
    a("L2_rk_done:")
    a(f"  s_mov_b64 exec, -1\n  v_mov_b32 v{vT3}, 1\n  s_waitcnt lgkmcnt(0)")
    for r in range(NR):
        guard(r, f"L2_key_done")
        a(f"  s_mov_b64 exec, s[{sM+2*r}:{sM+2*r+1}]")
        w0 = pREC + 4 * r; rk = pBASE + r
        a(f"  v_bfe_i32 v{vT0}, v{rk}, 3, 1\n  v_xor_b32 v{vT0}, v{vT0}, v{rk}\n  v_and_b32 v{vT0}, 7, v{vT0}")
        a(f"  v_lshrrev_b32 v{vT1}, 18, v{w0}\n  v_lshlrev_b32 v{vT1}, 2, v{vT1}")
        a(f"  v_lshl_add_u32 v{pKEY+r}, v{vT0}, 8, v{vT1}")
        a(f"  ds_add_rtn_u32 v{pRANK+r}, v{pKEY+r}, v{vT3} offset:{L_CNT}")
        a(f"  v_and_b32 v{w0}, 0xffffffc0, v{w0}\n  v_and_or_b32 v{w0}, v{rk}, 56, v{w0}")
    a("L2_key_done:")
    a("  s_mov_b64 exec, -1")
    if TOUCH == 2: touch(2)
    a("  s_waitcnt lgkmcnt(0)\n  s_barrier")
    fstamp(3)
    if TOUCH == 3: touch(3)
    a(f"  s_lshl_b32 s{sT0}, s{sWAVE}, 8\n  v_lshl_add_u32 v{vT0}, v{vLane}, 2, s{sT0}")
    a(f"  ds_read_b32 v{vT1}, v{vT0} offset:{L_CNT}\n  s_waitcnt lgkmcnt(0)\n  v_mov_b32 v{vT2}, v{vT1}")
    wave_scan(a, vT2)
    a(f"  v_sub_u32 v{vT1}, v{vT2}, v{vT1}")
    a(f"  v_readlane_b32 s{sN}, v{vT2}, 63")
    a(f"  ds_write_b32 v{vT0}, v{vT1} offset:{L_CNT}")
    a(f"  s_cmp_gt_u32 s{sN}, {CAPFILL}\n  s_cbranch_scc0 L2_noovf")
    a(f"  v_mov_b32 v{vT0}, {L_FLAG}\n  v_mov_b32 v{vT1}, 1\n  ds_write_b32 v{vT0}, v{vT1}")
    a("  s_branch L2_padded")
    a("L2_noovf:")
    a(f"  s_lshl_b32 s{sT0}, s{sN}, 4\n  s_add_u32 s{sT0}, s{sT0}, s{sLISTW}\n  v_add_u32 v{vT0}, s{sT0}, v{vL16}")
    a(f"  v_mov_b32 v{vREC}, {DUMMY_W0}\n  v_mov_b32 v{vREC+1}, {DUMMY_W1}\n  v_mov_b32 v{vREC+2}, 0\n  v_mov_b32 v{vREC+3}, 0")
    a(f"  s_mov_b32 exec_hi, 0\n  ds_write_b128 v{vT0}, v[{vREC}:{vREC+3}]\n  s_mov_b64 exec, -1")
    a("L2_padded:")
    a("  s_waitcnt lgkmcnt(0)\n  s_barrier")
    fstamp(4)
    if TOUCH == 4: touch(4)
    a(f"  v_mov_b32 v{vT0}, {L_FLAG}\n  ds_read_b64 v[{vKPn}:{vKPn+1}], v{vT0}")
    for r in range(NR):
        guard(r, f"L2_base_done")
        a(f"  s_mov_b64 exec, s[{sM+2*r}:{sM+2*r+1}]")
        a(f"  ds_read_b32 v{pBASE+r}, v{pKEY+r} offset:{L_CNT}")
    a("L2_base_done:")
    a("  s_mov_b64 exec, -1\n  s_waitcnt lgkmcnt(0)")
    a(f"  v_readfirstlane_b32 s{sFLAG}, v{vKPn}\n  v_readfirstlane_b32 s{sMAXL}, v{vKPn+1}")
    a(f"  s_cmp_lg_u32 s{sFLAG}, 0\n  s_cbranch_scc1 L2_overflow")
    for r in range(NR):
        guard(r, f"L2_scat_done")
        a(f"  s_mov_b64 exec, s[{sM+2*r}:{sM+2*r+1}]")
        w0 = pREC + 4 * r
        a(f"  v_lshrrev_b32 v{vT0}, 8, v{pKEY+r}\n  v_mul_u32_u24 v{vT0}, {CAPW*16}, v{vT0}")
        a(f"  v_add_u32 v{vT1}, v{pBASE+r}, v{pRANK+r}\n  v_lshl_add_u32 v{vT0}, v{vT1}, 4, v{vT0}")
        a(f"  ds_write_b128 v{vT0}, v[{w0}:{w0+3}] offset:{L_LIST}")
    a("L2_scat_done:")
    a("  s_mov_b64 exec, -1\n  s_waitcnt lgkmcnt(0)\n  s_barrier")
    stamp(3)
    fstamp(5)
    gstamp(0)

    def kcompute(dst, tmp):
        for i in range(4): a(f"  v_dot2_f32_bf16 v{tmp+i}, v{vREC+3}, v{vCG+2*i+1}, 0")
        for i in range(4): a(f"  v_dot2_f32_bf16 v{tmp+i}, v{vREC+2}, v{vCG+2*i}, v{tmp+i}")
        a("  s_nop 2")
        a(f"  v_cvt_pk_bf16_f32 v{dst}, v{tmp}, v{tmp+1}\n  v_cvt_pk_bf16_f32 v{dst+1}, v{tmp+2}, v{tmp+3}")
    def bigm(i, zb):
        t, half = i >> 1, i & 1
        z = vZZ + 32 * zb + 16 * t
        c = "0" if half == 0 else f"v[{z}:{z+15}]"
        A_ = vA + 4 * half; B_ = vWB + (t * 2 + half) * 4
        return f"  v_mfma_f32_32x32x16_bf16 v[{z}:{z+15}], v[{A_}:{A_+3}], v[{B_}:{B_+3}], {c}"
    def aread():
        a(f"  ds_read_b128 v[{vA}:{vA+3}], v{vA1A}\n  ds_read_b128 v[{vA+4}:{vA+7}], v{vA2A}")
        a(f"  v_add_u32 v{vA1A}, v{vA1A}, v{vInc1}\n  v_add_u32 v{vA2A}, v{vA2A}, v{vInc2}")
    def rowload(slot, so):
        a(f"  buffer_load_dwordx4 v[{vROW+4*slot}:{vROW+4*slot+3}], v{vL16}, s[{sX}:{sX+3}], s{so} offen{' nt' if opt.get('xnt') else ''}")
    def rowoff(dst, src):
        if opt.get("nomem"): a(f"  s_and_b32 s{dst}, s{src}, 0x3c00")
        else: a(f"  s_andn2_b32 s{dst}, s{src}, 63")

    if opt.get("prio") == 1:
        a(f"  s_cmp_ge_u32 s{sWAVE}, 4\n  s_cbranch_scc0 L2_noprio\n  s_setprio 1\nL2_noprio:")
    a(f"  s_cmp_eq_u32 s{sN}, 0\n  s_cbranch_scc1 L2_loop_exit")
    a(f"  s_add_u32 s{sG}, s{sN}, 3\n  s_lshr_b32 s{sG}, s{sG}, 2")
    a(f"  v_lshrrev_b32 v{vT0}, 2, v{vLane}\n  v_lshlrev_b32 v{vT0}, 4, v{vT0}\n  v_add_u32 v{vRecA}, s{sLISTW}, v{vT0}")
    a(f"  ds_read_b128 v[{vREC}:{vREC+3}], v{vRecA}")
    a(f"  v_lshrrev_b32 v{vT0}, 1, v{vLane}\n  v_lshlrev_b32 v{vT0}, 4, v{vT0}\n  v_add_u32 v{vT0}, s{sLISTW}, v{vT0}")
    for i in range(4):
        a(f"  ds_read_b32 v{vT+i}, v{vT0} offset:{i*512+4}")
    a(f"  v_and_b32 v{vT1}, 1, v{vLane}\n  v_lshlrev_b32 v{vT1}, 4, v{vT1}")
    a(f"  v_bfe_u32 v{vT2}, v{vLane}, 3, 2\n  v_lshlrev_b32 v{vT2}, 2, v{vT2}\n  v_and_b32 v{vT3}, 3, v{vLane}\n  v_add_u32 v{vT2}, v{vT2}, v{vT3}")
    a(f"  v_lshlrev_b32 v{vT2}, 5, v{vT2}\n  v_lshrrev_b32 v{vT3}, 5, v{vLane}\n  v_lshl_add_u32 v{vT2}, v{vT3}, 4, v{vT2}\n  v_add_u32 v{vT2}, s{sEFLW}, v{vT2}")
    a(f"  v_and_b32 v{vT3}, 4, v{vLane}\n  v_cmp_eq_u32 vcc, 0, v{vT3}")
    a(f"  v_mov_b32 v{vT3}, {L_ZERO}\n  v_mov_b32 v{vInc2}, 512\n  v_mov_b32 v{vW0}, 0")
    a(f"  v_cndmask_b32 v{vA1A}, v{vT3}, v{vT2}, vcc\n  v_cndmask_b32 v{vA2A}, v{vT2}, v{vT3}, vcc")
    a(f"  v_cndmask_b32 v{vInc1}, v{vW0}, v{vInc2}, vcc\n  v_cndmask_b32 v{vInc2}, v{vInc2}, v{vW0}, vcc")
    a(f"  s_mov_b32 s{sT1}, {EFS if PACK else 0}\n  s_mov_b32 m0, s{sEFLW}")
    a(f"  v_lshrrev_b32 v{vT2}, 1, v{vLane}\n  v_mov_b32 v{vT3}, {DUMMY_W1}")
    a("  s_waitcnt lgkmcnt(0)")
    def efdma(i):
        a(f"  v_add_u32 v{vT+4}, {32*i}, v{vT2}\n  v_cmp_gt_u32 vcc, s{sN}, v{vT+4}")
        a(f"  v_add_u32 v{vT+i}, v{vT+i}, v{vT1}")
        a(f"  s_add_u32 m0, s{sEFLW}, {1024*i}")
        a(f"  v_cndmask_b32 v{vT+i}, v{vT3}, v{vT+i}, vcc")
        a(f"  buffer_load_dwordx4 v{vT+i}, s[{sFE}:{sFE+3}], s{sT1} offen {EFPOL} lds")
    a(f"  s_cmp_le_u32 s{sN}, 128\n  s_cbranch_scc1 L2_dma_small")
    a(f"  s_movk_i32 s{sT0}, 128")
    a("L2_dma_more:")
    a(f"  s_lshl_b32 s{sO}, s{sT0}, 4\n  v_add_u32 v{vT+5}, s{sO}, v{vT0}\n  ds_read_b32 v{vT+5}, v{vT+5} offset:4")
    a(f"  s_lshl_b32 s{sO}, s{sT0}, 5\n  s_add_u32 m0, s{sEFLW}, s{sO}\n  s_waitcnt lgkmcnt(0)")
    a(f"  v_add_u32 v{vT+5}, v{vT+5}, v{vT1}")
    a(f"  buffer_load_dwordx4 v{vT+5}, s[{sFE}:{sFE+3}], s{sT1} offen {EFPOL} lds")
    a(f"  s_add_u32 s{sT0}, s{sT0}, 32\n  s_cmp_lt_u32 s{sT0}, s{sN}\n  s_cbranch_scc1 L2_dma_more")
    a("L2_dma_small:")
    gstamp(1)
    efdma(0)
    for j in range(8):
        a(f"  v_readlane_b32 s{sW+j}, v{vREC}, {4*j}")
        rowoff(sO, sW + j)
        rowload(j, sO)
    for i in range(1, 4): efdma(i)
    a(f"  v_mov_b32 v{vW0}, v{vREC}")
    a(f"  v_and_b32 v{vT2}, 3, v{vLane}\n  v_lshlrev_b32 v{vT2}, 1, v{vT2}\n  v_add_u32 v{vT2}, {L_WRAD}, v{vT2}")
    for i in range(4):
        for f in range(4):
            a(f"  ds_read_u16 v{vZZ+16+4*i+f}, v{vT2} offset:{4096+(i*16+f*4)*2}")
    a("  s_waitcnt lgkmcnt(0)")
    for i in range(4):
        a(f"  v_lshl_or_b32 v{vCG+2*i}, v{vZZ+16+4*i+1}, 16, v{vZZ+16+4*i}")
        a(f"  v_lshl_or_b32 v{vCG+2*i+1}, v{vZZ+16+4*i+3}, 16, v{vZZ+16+4*i+2}")
    a(f"  v_lshrrev_b32 v{vT1}, 5, v{vLane}\n  v_lshlrev_b32 v{vT1}, 11, v{vT1}\n  v_and_b32 v{vT2}, 31, v{vLane}\n  v_lshl_add_u32 v{vT1}, v{vT2}, 2, v{vT1}\n  v_add_u32 v{vT1}, {L_WRAD}, v{vT1}")
    for half in range(2):
        for j in range(8):
            a(f"  ds_read_b32 v{pW+8*half+j}, v{vT1} offset:{j*256+half*128}")
    a("  s_waitcnt lgkmcnt(0)")
    for t in range(2):
        for half in range(2):
            for jj in range(4):
                a(f"  v_perm_b32 v{vWB+(t*2+half)*4+jj}, v{pW+8*half+2*jj+1}, v{pW+8*half+2*jj}, s{sP1 if t == 0 else sP2}")
    kcompute(vKP, vTP)
    a(f"  v_add_u32 v{vRecA}, 256, v{vRecA}")
    gstamp(2)
    a("  s_waitcnt vmcnt(11)")
    gstamp(3)
    aread()
    a("  s_waitcnt lgkmcnt(0)")
    for i in range(4): a(bigm(i, 0))
    a("  s_nop 7")
    aread()
    a("  s_nop 7")
    def inter(x, y):
        for i in range(max(len(x), len(y))):
            if i < len(x): a(x[i])
            if i < len(y): a(y[i])
    def batch(cb, first, tail):
        for gi in range(4):
            z0 = vZZ + 32 * cb + 4 * gi; z1 = z0 + 16
            zp = [z0, z0 + 2, z1, z1 + 2]
            nset = (gi + 2) % 4
            if opt.get("prio") == 3:
                a(f"  s_cmp_ge_u32 s{sWAVE}, 4\n  s_cbranch_scc{1 if gi % 2 == 0 else 0} L2_pl_{cb}_{gi}_{int(first)}\n  s_setprio 1\n  s_branch L2_ph_{cb}_{gi}_{int(first)}\nL2_pl_{cb}_{gi}_{int(first)}:\n  s_setprio 0\nL2_ph_{cb}_{gi}_{int(first)}:")
            if opt.get("prio") == 4 and gi == 0:
                a(f"  s_cmp_ge_u32 s{sWAVE}, 4\n  s_cbranch_scc{1 if cb == 0 else 0} L2_pl_{cb}_{gi}_{int(first)}\n  s_setprio 1\n  s_branch L2_ph_{cb}_{gi}_{int(first)}\nL2_pl_{cb}_{gi}_{int(first)}:\n  s_setprio 0\nL2_ph_{cb}_{gi}_{int(first)}:")
            if gi == 0:
                a("  s_waitcnt lgkmcnt(0)")
                a(f"  ds_read_b128 v[{vREC}:{vREC+3}], v{vRecA}")
            if gi == 1:
                a("  s_waitcnt lgkmcnt(0)")
            sm = [f"  v_pk_mul_f32 v[{vT+2*p}:{vT+2*p+1}], v[{zp[p]}:{zp[p]+1}], s[{sNLOG}:{sNLOG+1}]" for p in range(4)]
            ex = [f"  v_exp_f32 v{vT+i}, v{vT+i}" for i in range(8)]
            sa = [f"  v_pk_add_f32 v[{vT+2*p}:{vT+2*p+1}], v[{vT+2*p}:{vT+2*p+1}], 1.0 op_sel_hi:[1,0]" for p in range(4)]
            rc = [f"  v_rcp_f32 v{vT+i}, v{vT+i}" for i in range(8)]
            sr = [f"  v_pk_mul_f32 v[{vRR+2*p}:{vRR+2*p+1}], v[{zp[p]}:{zp[p]+1}], v[{vT+2*p}:{vT+2*p+1}]" for p in range(4)]
            rl = []
            for q in range(4):
                src, ln = (vW0, 4 * (4 * (gi + 2) + q)) if gi < 2 else (vREC, 4 * (4 * (gi - 2) + q))
                rl.append(f"  v_readlane_b32 s{sW+4*nset+q}, v{src}, {ln}")
            tp = []
            for r in range(4):
                sl = (gi % 2) * 4 + r
                for t in range(2):
                    tp.append(f"  v_mfma_f32_4x4x4_16b_bf16 v[{vTP+8*r+4*t}:{vTP+8*r+4*t+3}], v[{vKP}:{vKP+1}], v[{vROW+4*sl+2*t}:{vROW+4*sl+2*t+1}], 0 cbsz:4 abid:{4*gi+r}")
            for x in sm: a(x)
            inter(ex, [bigm(gi, 1 - cb)])
            for x in sa: a(x)
            for x in rl: a(x)
            if gi == 1: kcompute(vKPn, vTP)
            a(f"  s_waitcnt vmcnt({7 if (first and gi < 2) else 4})")
            if first and gi == 0: gstamp(4)
            if first and gi == 3: gstamp(5)
            if gi == 3: aread()
            inter(tp, rc)
            for r in range(4): rowoff(sO + r, sW + 4 * nset + r)
            for r in range(4): rowload((gi % 2) * 4 + r, sO + r)
            for x in sr: a(x)
            for r in range(4):
                a(f"  s_set_gpr_idx_on s{sW+4*gi+r}, gpr_idx(SRC2,DST)" if r == 0 else f"  s_set_gpr_idx_idx s{sW+4*gi+r}")
                for t in range(2):
                    rr = vRR + 4 * t + (r & ~1)
                    sel = "op_sel:[0,1,0] op_sel_hi:[1,1,1]" if r & 1 else "op_sel:[0,0,0] op_sel_hi:[1,0,1]"
                    for h in range(2):
                        d = vACC + 4 * t + 2 * h; tpp = vTP + 8 * r + 4 * t + 2 * h
                        a(f"  v_pk_fma_f32 v[{d}:{d+1}], v[{tpp}:{tpp+1}], v[{rr}:{rr+1}], v[{d}:{d+1}] {sel}")
            a("  s_set_gpr_idx_off")
            if gi == 3:
                a(f"  v_mov_b32 v{vKP}, v{vKPn}\n  v_mov_b32 v{vKP+1}, v{vKPn+1}\n  v_mov_b32 v{vW0}, v{vREC}")
                a(f"  v_add_u32 v{vRecA}, 256, v{vRecA}")
            a(f"  s_sub_u32 s{sG}, s{sG}, 1\n  s_cmp_eq_u32 s{sG}, 0")
            if gi == 3 and tail: a(f"  s_cbranch_scc0 {tail}")
            else: a("  s_cbranch_scc1 L2_loop_exit")
    batch(0, True, None)
    a("L2_batch1:")
    batch(1, False, None)
    batch(0, False, "L2_batch1")
    a("L2_loop_exit:")
    a("  s_waitcnt vmcnt(0) lgkmcnt(0)")
    stamp(4)
    a(f"  s_add_u32 s{sKB}, s{sKB}, s{sSTEP}\n  s_cmp_lt_u32 s{sKB}, s{sMAXL}\n  s_cbranch_scc0 L2_epilogue")
    a("L2_rezero:")
    a("  s_barrier")
    a(f"  v_lshlrev_b32 v{vT1}, 2, v0\n  v_mov_b32 v{vT2}, 0\n  ds_write_b32 v{vT1}, v{vT2} offset:{L_CNT}")
    a(f"  v_mov_b32 v{vT1}, {L_FLAG}\n  ds_write_b32 v{vT1}, v{vT2}")
    a(f"  v_mov_b32 v{vT1}, {L_FLAG+4}\n  ds_max_u32 v{vT1}, v{vLen}")
    a("  s_waitcnt lgkmcnt(0)\n  s_barrier\n  s_branch L2_pass")
    a("L2_overflow:")
    a(f"  s_mov_b32 s{sSTEP}, 1\n  s_branch L2_rezero")

    a("L2_epilogue:")
    eA = vTP; eBb = [vROW, vROW + 16]; eD = vACC
    vAa, vAb, vBa, vBx, vOut = vRecA, vA1A, vA2A, vW0, vInc1
    a(f"  v_add_u32 v{vT0}, s{sEFLW}, v{vL16}")
    for s in range(5):
        b = vACC + 8 * s; p = vROW + 4 * (s % 2)
        for i in range(4): a(f"  v_cvt_pk_bf16_f32 v{p+i}, v{b+2*i}, v{b+2*i+1}")
        a(f"  ds_write_b128 v{vT0}, v[{p}:{p+3}] offset:{s*AGG_STRIDE}")
        a("  s_nop 1")
    a(f"  v_lshrrev_b32 v{vT1}, 4, v{vLane}\n  v_bfe_u32 v{vT2}, v{vLane}, 2, 2\n  v_lshl_add_u32 v{vT2}, v{vT1}, 2, v{vT2}\n  v_and_b32 v{vT3}, 3, v{vLane}")
    a(f"  v_lshlrev_b32 v{vAa}, 3, v{vT2}\n  v_add_u32 v{vAa}, s{sEFLW}, v{vAa}")
    a(f"  v_mul_u32_u24 v{vAb}, {AGG_STRIDE}, v{vT3}\n  v_add_u32 v{vAb}, v{vAb}, v{vAa}")
    a(f"  v_and_b32 v{vBx}, 7, v{vT2}\n  v_lshlrev_b32 v{vBx}, 1, v{vBx}")
    a(f"  v_lshrrev_b32 v{vBa}, 1, v{vT3}\n  v_xor_b32 v{vBa}, v{vBa}, v{vBx}\n  v_lshlrev_b32 v{vBa}, 4, v{vBa}")
    a(f"  v_and_b32 v{vBx}, 1, v{vT3}\n  v_lshl_add_u32 v{vBa}, v{vBx}, 3, v{vBa}")
    a(f"  v_lshl_add_u32 v{vBa}, v{vT2}, 8, v{vBa}\n  v_add_u32 v{vBa}, {L_WMIX}, v{vBa}")
    a("  s_waitcnt lgkmcnt(0)")
    for tile in range(2):
        for s in range(4):
            for h in range(2):
                d = eA + tile * 16 + s * 4 + h * 2
                if tile == 0: a(f"  ds_read_b64_tr_b16 v[{d}:{d+1}], v{vAb} offset:{(32*s+16*h)*8}")
                else: a(f"  ds_read_b64_tr_b16 v[{d}:{d+1}], v{vAa} offset:{4*AGG_STRIDE+(32*s+16*h)*8}")
    vOut1 = vInc2
    a(f"  v_and_b32 v{vOut}, 1, v{vT1}\n  v_mul_u32_u24 v{vOut}, 7, v{vOut}\n  v_xor_b32 v{vOut}, s{sWAVE}, v{vOut}\n  v_lshl_add_u32 v{vOut}, v{vT1}, 3, v{vOut}")
    a(f"  v_lshlrev_b32 v{vOut}, 2, v{vOut}\n  ds_read_b32 v{vOut}, v{vOut} offset:{L_INV}")
    a(f"  s_lshl_b32 s{sT1}, s{sWAVE}, 2\n  v_mov_b32 v{vOut1}, s{sT1}\n  ds_read_b32 v{vOut1}, v{vOut1} offset:{L_INV+128}")
    a(f"  s_mul_i32 s{sT0}, s2, 625\n  s_add_u32 s{sT1}, s{sT0}, {625+15}\n  s_add_u32 s{sT0}, s{sT0}, 15")
    a(f"  s_lshr_b32 s{sT0}, s{sT0}, 4\n  s_lshr_b32 s{sT1}, s{sT1}, 4\n  s_sub_u32 s{sT1}, s{sT1}, s{sT0}\n  s_lshl_b32 s{sT0}, s{sT0}, 10")
    a(f"  v_and_b32 v{vT2}, 15, v{vLane}\n  v_lshlrev_b32 v{vT2}, 4, v{vT2}")
    a("  s_waitcnt lgkmcnt(0)")
    a(f"  v_cmp_gt_u32 s[{sM}:{sM+1}], s{sT1}, v{vOut}\n  v_cmp_gt_u32 s[{sM+2}:{sM+3}], s{sT1}, v{vOut1}")
    a(f"  v_lshl_add_u32 v{vOut}, v{vOut}, 10, v{vT2}\n  v_lshl_add_u32 v{vOut1}, v{vOut1}, 10, v{vT2}")
    a(f"  s_and_b32 s{sM+2}, s{sM+2}, 0xffff\n  s_mov_b32 s{sM+3}, 0")
    def bload(ct):
        a(f"  v_xor_b32 v{vBx}, {ct*32}, v{vBa}")
        for s in range(4):
            for h in range(2):
                d = eBb[ct % 2] + s * 4 + h * 2
                a(f"  ds_read_b64_tr_b16 v[{d}:{d+1}], v{vBx} offset:{(32*s+16*h)*256}")
    def store_u(u):
        for tile in range(2):
            da = eD + (u % 2) * 16 + tile * 4; db = da + 8; p = vT + 4 * tile
            a(f"  v_cvt_pk_bf16_f32 v{p}, v{da}, v{da+1}\n  v_cvt_pk_bf16_f32 v{p+1}, v{da+2}, v{da+3}")
            a(f"  v_cvt_pk_bf16_f32 v{p+2}, v{db}, v{db+1}\n  v_cvt_pk_bf16_f32 v{p+3}, v{db+2}, v{db+3}")
        a(f"  s_mov_b64 exec, s[{sM}:{sM+1}]")
        a(f"  buffer_store_dwordx4 v[{vT}:{vT+3}], v{vOut}, s[{sOUT}:{sOUT+3}], s{sT0} offen offset:{u*256} {OPOL}")
        a(f"  s_mov_b64 exec, s[{sM+2}:{sM+3}]")
        a(f"  buffer_store_dwordx4 v[{vT+4}:{vT+7}], v{vOut1}, s[{sOUT}:{sOUT+3}], s{sT0} offen offset:{u*256} {OPOL}")
        a("  s_mov_b64 exec, -1")
    bload(0)
    for ct in range(8):
        if ct + 1 < 8:
            bload(ct + 1)
            a("  s_waitcnt lgkmcnt(8)")
        else:
            a("  s_waitcnt lgkmcnt(0)")
        u = ct // 2
        for tile in range(2):
            d = eD + (u % 2) * 16 + (ct % 2) * 8 + tile * 4
            for s in range(4):
                c = "0" if s == 0 else f"v[{d}:{d+3}]"
                A_ = eA + tile * 16 + s * 4; B_ = eBb[ct % 2] + s * 4
                a(f"  v_mfma_f32_16x16x32_bf16 v[{d}:{d+3}], v[{A_}:{A_+3}], v[{B_}:{B_+3}], {c}")
        if ct % 2 == 0 and ct > 0: store_u(u - 1)
    a("  s_nop 7")
    store_u(3)
    if stamps:
        stamp(5)
        a("  s_waitcnt lgkmcnt(0)")
        ws0, ws1 = (6, 7) if PACK else (100, 101)
        a(f"  s_mov_b32 s{sOFFSRD}, s{ws0}\n  s_mov_b32 s{sOFFSRD+1}, s{ws1}\n  s_mov_b32 s{sOFFSRD+2}, 0x10000000\n  s_mov_b32 s{sOFFSRD+3}, 0x20000")
        a(f"  s_lshl_b32 s{sT0}, s2, 3\n  s_add_u32 s{sT0}, s{sT0}, s{sWAVE}\n  s_mul_i32 s{sT0}, s{sT0}, 64\n  s_add_u32 s{sT0}, s{sT0}, {STAMP_OFF}")
        a(f"  v_mov_b32 v{vT+2}, 0")
        for i in range(6):
            a(f"  v_mov_b32 v{vT+0}, s{sST+2*i}\n  v_mov_b32 v{vT+1}, s{sST+2*i+1}")
            a(f"  buffer_store_dwordx2 v[{vT}:{vT+1}], v{vT+2}, s[{sOFFSRD}:{sOFFSRD+3}], s{sT0} offen offset:{8*i}")
            a("  s_waitcnt vmcnt(0)")
    a("L2_end:")
    a("  s_endpgm")
    return NV, NS

def build(opt):
    a = A()
    a(f"; @launch kernel={K1} grid=({NCH},1,1) block=({CH},1,1) lds={max(K1_LDS if opt.get('pack', 1) else (2048 + 10240 if opt.get('kstage') else 2048), opt.get('lds1', 0))}")
    a(f"; @launch kernel={K2} grid=({NB},1,1) block=(512,1,1) lds={LDS2}")
    a('.amdgcn_target "amdgcn-amd-amdhsa--gfx950"')
    a(".text")
    gen_k1(a, opt)
    nv, ns = gen_k2(a, opt)
    a('.section .rodata,"a"\n.p2align 6')
    a(kd(K1, 48, 64))
    a(".p2align 6")
    a(kd(K2, nv, ns))
    return a.text(), nv

if __name__ == "__main__":
    out = sys.argv[1]
    opt = {}
    for x in sys.argv[2:]:
        k, _, val = x.partition("=")
        opt[k] = int(val) if val else True
    t, nv = build(opt)
    open(out, "w").write(t)
    print("wrote", out, "LDS2 =", LDS2, "NV =", nv)
```

```python
import sys

N, E, C = 10000, 160000, 128
NB, NPB = 256, 40
NCH, CH = 125, 1280
T1 = CH // 2
TPC = 4
OFFS = 0
RECS = 0x40000
EFS = RECS + E * 16
WS_USED = EFS + E * 32
STAMP_OFF, STAMP1_OFF = 0x4000000, 0x4100000
K1 = "bin_edges_kernel"
K2 = "gather_scatter__tensor_product_equiv_tfn__graph_kernel"

class A:
    def __init__(self): self.L = []
    def __call__(self, s):
        for line in s.strip("\n").split("\n"): self.L.append(line)
    def text(self): return "\n".join(self.L) + "\n"

class V:
    def __init__(self, start=1): self.n = start
    def get(self, cnt=1, align=1):
        self.n = (self.n + align - 1) // align * align
        r = self.n; self.n += cnt
        return r

def srd(a, r, lo, size):
    a(f"  s_mov_b32 s{r}, s{lo}\n  s_mov_b32 s{r+1}, s{lo+1}\n  s_mov_b32 s{r+2}, {size}\n  s_mov_b32 s{r+3}, 0x20000")

def wave_scan(a, v, op="v_add_u32"):
    for ctl in ("row_shr:1", "row_shr:2", "row_shr:4", "row_shr:8"):
        a(f"  s_nop 1\n  {op}_dpp v{v}, v{v}, v{v} {ctl} row_mask:0xf bank_mask:0xf bound_ctrl:0")
    a(f"  s_nop 1\n  {op}_dpp v{v}, v{v}, v{v} row_bcast:15 row_mask:0xa bank_mask:0xf")
    a(f"  s_nop 1\n  {op}_dpp v{v}, v{v}, v{v} row_bcast:31 row_mask:0xc bank_mask:0xf")

def hwslot(a, dst, tmp):
    a(f"  s_getreg_b32 s{dst}, hwreg(HW_REG_HW_ID, 13, 2)")
    a(f"  s_getreg_b32 s{tmp}, hwreg(HW_REG_HW_ID, 8, 4)")
    a(f"  s_mul_i32 s{dst}, s{dst}, 9\n  s_add_u32 s{dst}, s{dst}, s{tmp}")

def kd(name, nv, ns):
    return f""".amdhsa_kernel {name}
  .amdhsa_next_free_vgpr {nv}
  .amdhsa_next_free_sgpr {ns}
  .amdhsa_accum_offset {min((nv + 3) // 4 * 4, 256)}
  .amdhsa_group_segment_fixed_size 0
  .amdhsa_kernarg_size 88
  .amdhsa_user_sgpr_count 2
  .amdhsa_user_sgpr_kernarg_segment_ptr 1
  .amdhsa_system_sgpr_workgroup_id_x 1
  .amdhsa_float_denorm_mode_32 3
.end_amdhsa_kernel"""

K1_CNT, K1_BASE, K1_INV, K1_HDR, K1_EF = 0, 1024, 2048, 4608, 14848
K1_LDS = K1_EF + CH * 32

def gen_k1(a, opt):
    stamps = opt.get("stamps", False)
    def stamp(i):
        if stamps: a(f"  s_memrealtime s[{48+2*i}:{48+2*i+1}]")
    KPOL = {0: "", 1: "nt", 2: "sc1", 3: "sc0 sc1"}[opt.get("kpol", 2)]
    sSRC, sDST, sY, sWS = 16, 20, 24, 28
    L_C, L_B, L_H = 0, 1024, 2048
    PACK = opt.get("pack", 1); EPOS = opt.get("epos", 1)
    L_I = L_H + CH * 16; L_E = L_I + CH * 4
    a(f".globl {K1}\n.p2align 8\n.type {K1},@function\n{K1}:")
    a(f"  s_cmp_ge_u32 s2, {NCH}\n  s_cbranch_scc1 L1_end")
    stamp(0)
    a("  s_load_dwordx4 s[4:7], s[0:1], 8")
    a("  s_load_dwordx2 s[8:9], s[0:1], 24")
    a("  s_load_dwordx2 s[40:41], s[0:1], 80")
    WX = opt.get("wx", 0); WE = opt.get("we", 0); WPOS = opt.get("wpos", 1)
    if WX: a("  s_load_dwordx2 s[42:43], s[0:1], 0")
    if WE or PACK: a("  s_load_dwordx2 s[44:45], s[0:1], 32")
    a("  v_lshlrev_b32 v1, 2, v0\n  v_mov_b32 v2, 0\n  v_lshrrev_b32 v21, 6, v0")
    a("  v_cmp_gt_u32 vcc, 256, v0\n  s_and_saveexec_b64 s[12:13], vcc")
    a(f"  ds_write_b32 v1, v2 offset:{L_C}")
    a("  s_mov_b64 exec, s[12:13]")
    a(f"  s_mul_i32 s14, s2, {CH}")
    a("  v_lshl_add_u32 v3, v0, 1, s14")
    a("  v_readfirstlane_b32 s15, v21")
    a("  v_lshlrev_b32 v4, 2, v3\n  v_lshlrev_b32 v5, 3, v3")
    a("  v_and_b32 v22, 63, v0\n  v_lshlrev_b32 v22, 4, v22")
    a("  s_waitcnt lgkmcnt(0)")
    srd(a, sDST, 6, E * 4)
    a(f"  buffer_load_dwordx2 v[6:7], v4, s[{sDST}:{sDST+3}], 0 offen")
    srd(a, sSRC, 4, E * 4)
    a(f"  buffer_load_dwordx2 v[24:25], v4, s[{sSRC}:{sSRC+3}], 0 offen")
    srd(a, sY, 8, E * 8)
    a(f"  buffer_load_dwordx4 v[28:31], v5, s[{sY}:{sY+3}], 0 offen")
    srd(a, sWS, 40, WS_USED)
    if opt.get("codepf"):
        nk = opt.get("codepf")
        a(f"  s_lshr_b32 s34, s2, 3\n  s_cmp_ge_u32 s34, {nk}\n  s_cbranch_scc1 L1_nocode\n  s_cmp_lg_u32 s15, {T1//64 - 1}\n  s_cbranch_scc1 L1_nocode")
        a("  s_getpc_b64 s[62:63]")
        a("L1_pc:")
        a(f"  s_add_u32 s62, s62, {K2}-L1_pc\n  s_addc_u32 s63, s63, 0")
        a("  s_lshl_b32 s34, s34, 10\n  v_add_u32 v23, s34, v22")
        a(f"  s_mov_b32 s36, L2_text_end-{K2}-15\n  v_cmp_gt_u32 vcc, s36, v23\n  s_and_saveexec_b64 s[36:37], vcc")
        a("  s_cbranch_execz L1_code_done")
        a("  global_load_dwordx4 v[52:55], v23, s[62:63]")
        a("L1_code_done:")
        a("  s_mov_b64 exec, s[36:37]")
        a("L1_nocode:")
    def warm1():
        if WE:
            srd(a, 36, 44, E * 32)
            a(f"  s_mul_i32 s34, s2, {CH*32}\n  s_lshl_b32 s33, s15, 12\n  s_add_u32 s34, s34, s33")
            for k in range(4):
                a(f"  buffer_load_dwordx4 v[48:51], v22, s[36:39], s34 offen offset:{1024*k}")
        if WX:
            srd(a, 36, 42, N * 1024)
            a("  s_mul_i32 s34, s2, 5\n  s_add_u32 s34, s34, s15\n  s_lshl_b32 s34, s34, 10")
            for k in range(WX):
                a("  buffer_load_dwordx4 v[48:51], v22, s[36:39], s34 offen")
                if k + 1 < WX: a(f"  s_add_u32 s34, s34, {1250*1024}")
    def efdma1():
        srd(a, 36, 44, E * 32)
        a(f"  s_mul_i32 s34, s2, {CH*32}\n  s_lshl_b32 s33, s15, 12\n  s_add_u32 s34, s34, s33")
        for k in range(4):
            a(f"  s_add_u32 m0, s33, {L_E + 1024*k}\n  s_nop 0")
            a(f"  buffer_load_dwordx4 v22, s[36:39], s34 offen lds")
            if k < 3: a("  s_add_u32 s34, s34, 1024")
    NW = WX + (4 if WE else 0) + (4 if PACK else 0)
    if PACK:
        WPOS = EPOS
        warm1 = efdma1
    if WPOS == 0: warm1()
    a("  s_mov_b32 s35, 109951163\n  v_mov_b32 v17, 1")
    a("  s_barrier")
    a(f"  s_waitcnt vmcnt({2 + (NW if WPOS == 0 else 0)})")
    stamp(1)
    for k in range(2):
        d, b, key, rk, nd = 6 + k, 12 + k, 14 + k, 18 + k, 26 + k
        a(f"  v_mul_hi_u32 v{b}, s35, v{d}\n  v_min_u32 v{b}, 255, v{b}")
        a(f"  v_and_b32 v{key}, 7, v{b}\n  v_lshlrev_b32 v{key}, 7, v{key}\n  v_lshrrev_b32 v16, 3, v{b}\n  v_lshl_add_u32 v{key}, v16, 2, v{key}")
        a(f"  ds_add_rtn_u32 v{rk}, v{key}, v17 offset:{L_C}")
        a(f"  v_mul_u32_u24 v{nd}, 625, v{b}\n  v_add_u32 v{nd}, 15, v{nd}\n  v_lshrrev_b32 v{nd}, 4, v{nd}\n  v_sub_u32 v{nd}, v{d}, v{nd}")
    a(f"  s_waitcnt vmcnt({1 + (NW if WPOS == 0 else 0)})")
    a("  v_lshl_or_b32 v8, v24, 10, v26\n  v_lshlrev_b32 v9, 5, v3")
    a("  v_lshl_or_b32 v32, v25, 10, v27\n  v_add_u32 v33, 32, v9")
    if WPOS == 1: warm1()
    a("  s_waitcnt lgkmcnt(0)")
    a("  s_barrier")
    stamp(2)
    a("  s_cmp_lg_u32 s15, 0\n  s_cbranch_scc1 L1_noscan")
    a(f"  ds_read_b128 v[36:39], v22 offset:{L_C}")
    a("  s_waitcnt lgkmcnt(0)")
    a("  v_add_u32 v40, v36, v37\n  v_add_u32 v41, v40, v38\n  v_add_u32 v42, v41, v39\n  v_mov_b32 v43, v42")
    wave_scan(a, 43)
    a("  v_sub_u32 v44, v43, v42\n  v_add_u32 v45, v44, v36\n  v_add_u32 v46, v44, v40\n  v_add_u32 v47, v44, v41")
    a(f"  ds_write_b128 v22, v[44:47] offset:{L_B}")
    a("  v_lshl_or_b32 v36, v36, 16, v44\n  v_lshl_or_b32 v37, v37, 16, v45\n  v_lshl_or_b32 v38, v38, 16, v46\n  v_lshl_or_b32 v39, v39, 16, v47")
    a("  s_lshl_b32 s12, s2, 10")
    a(f"  buffer_store_dwordx4 v[36:39], v22, s[{sWS}:{sWS+3}], s12 offen offset:{OFFS} {KPOL}")
    a("  s_waitcnt lgkmcnt(0)")
    a("L1_noscan:")
    a("  s_barrier")
    stamp(3)
    a(f"  ds_read_b32 v12, v14 offset:{L_B}\n  ds_read_b32 v13, v15 offset:{L_B}")
    a("  s_cmp_lg_u32 s15, 0\n  s_cbranch_scc1 L1_w1")
    a(f"  s_waitcnt vmcnt({1 + NW})\n  s_branch L1_w2")
    a("L1_w1:")
    a(f"  s_waitcnt vmcnt({NW})")
    a("L1_w2:")
    a("  v_mov_b32 v10, v28\n  v_mov_b32 v11, v29\n  v_mov_b32 v34, v30\n  v_mov_b32 v35, v31")
    a("  s_waitcnt lgkmcnt(0)")
    a("  v_add_u32 v12, v12, v18\n  v_add_u32 v13, v13, v19")
    if PACK:
        a("  v_add_u32 v9, s14, v12\n  v_lshlrev_b32 v9, 5, v9\n  v_add_u32 v33, s14, v13\n  v_lshlrev_b32 v33, 5, v33")
        a("  v_lshlrev_b32 v14, 2, v12\n  v_lshlrev_b32 v15, 2, v13\n  v_lshlrev_b32 v16, 1, v0\n  v_add_u32 v17, 1, v16")
        a(f"  ds_write_b32 v14, v16 offset:{L_I}\n  ds_write_b32 v15, v17 offset:{L_I}")
    a("  v_lshlrev_b32 v12, 4, v12\n  v_lshlrev_b32 v13, 4, v13")
    a(f"  ds_write_b128 v12, v[8:11] offset:{L_H}\n  ds_write_b128 v13, v[32:35] offset:{L_H}")
    if PACK: a("  s_waitcnt vmcnt(0)" if False else "  s_cmp_lg_u32 s15, 0\n  s_cbranch_scc1 L1_w3\n  s_waitcnt vmcnt(1)\n  s_branch L1_w4\nL1_w3:\n  s_waitcnt vmcnt(0)\nL1_w4:")
    a("  s_waitcnt lgkmcnt(0)\n  s_barrier")
    a("  v_lshlrev_b32 v20, 4, v0")
    a(f"  ds_read_b128 v[8:11], v20 offset:{L_H}\n  ds_read_b128 v[32:35], v20 offset:{L_H + T1*16}")
    a(f"  s_lshl_b32 s12, s14, 4\n  s_add_u32 s12, s12, {RECS}\n  s_add_u32 s13, s12, {T1*16}")
    a("  s_waitcnt lgkmcnt(1)")
    a(f"  buffer_store_dwordx4 v[8:11], v20, s[{sWS}:{sWS+3}], s12 offen {KPOL}")
    a("  s_waitcnt lgkmcnt(0)")
    a(f"  buffer_store_dwordx4 v[32:35], v20, s[{sWS}:{sWS+3}], s13 offen {KPOL}")
    if PACK:
        a("  v_lshrrev_b32 v12, 1, v0\n  v_lshlrev_b32 v12, 2, v12\n  v_and_b32 v13, 1, v0\n  v_lshlrev_b32 v13, 4, v13")
        for u in range(4): a(f"  ds_read_b32 v{24+u}, v12 offset:{L_I + 640*u}")
        a(f"  s_lshl_b32 s12, s14, 5\n  s_add_u32 s12, s12, {EFS}")
        a("  s_waitcnt lgkmcnt(0)")
        for u in range(4):
            a(f"  v_lshl_add_u32 v{24+u}, v{24+u}, 5, v13\n  ds_read_b128 v[{36+4*u}:{39+4*u}], v{24+u} offset:{L_E}")
        for u in range(4):
            a(f"  s_waitcnt lgkmcnt({3-u})")
            a(f"  buffer_store_dwordx4 v[{36+4*u}:{39+4*u}], v20, s[{sWS}:{sWS+3}], s12 offen {KPOL}")
            if u < 3: a(f"  s_add_u32 s12, s12, {320*16}")
    if stamps:
        stamp(4)
        a("  s_waitcnt vmcnt(0)")
        stamp(5)
        a("  s_waitcnt lgkmcnt(0)")
        a("  s_mov_b32 s44, s40\n  s_mov_b32 s45, s41\n  s_mov_b32 s46, 0x10000000\n  s_mov_b32 s47, 0x20000")
        a(f"  s_mul_i32 s12, s2, 10\n  s_add_u32 s12, s12, s15\n  s_mul_i32 s12, s12, 64\n  s_add_u32 s12, s12, {STAMP1_OFF}")
        a("  v_mov_b32 v2, 0")
        for i in range(6):
            a(f"  v_mov_b32 v20, s{48+2*i}\n  v_mov_b32 v21, s{48+2*i+1}")
            a(f"  buffer_store_dwordx2 v[20:21], v2, s[44:47], s12 offen offset:{8*i}")
            a("  s_waitcnt vmcnt(0)")
    a("L1_end:")
    a("  s_endpgm")

L_CNT = 0
L_FLAG = 2048
L_ZERO = L_FLAG + 16
L_DEG = L_FLAG + 128
L_RANK = L_DEG + 256
L_INV = L_RANK + 256
CAPFILL = 256
CAPW = CAPFILL + 32
L_LIST = 4096
L_WMIX = L_LIST + 8 * CAPW * 16
L_EFL = L_WMIX + 128 * 256
AGG_STRIDE = 1088
L_WRAD = L_EFL + 8 * CAPW * 32
LDS2 = L_WRAD + 4096 + 256
DUMMY_W0 = 0x7FFFFC00 | 40
DUMMY_W1 = 0x7FFFFFE0

def gen_k2(a, opt):
    stamps = opt.get("stamps", False)
    R1 = 360 * opt.get("p1", 0) if not opt.get("pfall") else 0
    NR = 6
    OPOL = {0: "", 1: "nt", 2: "sc1", 3: "sc0 sc1", 4: "sc0 sc1 nt", 5: "sc1 nt"}[opt.get("opol", 0)]
    EFPOL = {0: "", 1: "nt", 2: "sc1", 3: "sc0 sc1", 4: "sc0 sc1 nt", 5: "sc1 nt", 6: "sc0"}[opt.get("efpol", 0)]
    v = V(1)
    vLane = v.get(); vL16 = v.get(); vT0 = v.get(); vT1 = v.get(); vT2 = v.get(); vT3 = v.get()
    vLen = v.get(); vRecOff = v.get(); vJ = v.get()
    vRecA = v.get(); vA1A = v.get(); vA2A = v.get(); vInc1 = v.get(); vInc2 = v.get(); vW0 = v.get()
    vREC = v.get(4, 4)
    vKP = v.get(2, 2); vKPn = v.get(2, 2)
    vA = v.get(8, 4)
    vCG = v.get(8, 2)
    vWB = v.get(16, 4)
    vRR = v.get(8, 2); vT = v.get(8, 2)
    vZZ = v.get(64, 4)
    vACC = v.get(48, 4)
    vROW = v.get(32, 4)
    vTP = v.get(32, 4)
    NV = v.n
    assert NV <= 256, NV
    pREC = vROW; pKEY = vTP; pRANK = vTP + 8; pBASE = vTP + 16
    pW = vZZ
    pM = vZZ + 36
    vOL = vTP + 24; vRem = vTP + 25; vD0 = vTP + 26; vD1 = vTP + 27
    vPF = vZZ + 32
    sX, sWS, sOUT, sTMP = 8, 12, 20, 24
    sEFLW = 16; sLISTW = 17; sPF = 18; sNODE = 19
    sWAVE, sN, sG, sKB, sSTEP, sMAXL, sT0, sT1, sFLAG = 28, 29, 30, 31, 32, 33, 35, 36, 37
    sNLOG = 38; sM = 40; sW = 56; sO = 72; sSAVE = 76; sP1 = 78; sP2 = 79; sOFFSRD = 80; sST = 88
    NS = 102
    FINE = opt.get("fine", 0)
    def fstamp(i):
        if stamps and FINE == 1: a(f"  s_memrealtime s[{sST+2*i}:{sST+2*i+1}]")
    def gstamp(i):
        if stamps and FINE == 2: a(f"  s_memrealtime s[{sST+2*i}:{sST+2*i+1}]")
    def stamp(i):
        if stamps and FINE: return
        if stamps:
            if opt.get("clk") and i in (1, 2): return
            a(f"  s_memrealtime s[{sST+2*i}:{sST+2*i+1}]")
            if opt.get("clk") and i in (3, 4): a(f"  s_memtime s[{sST+2*(i-2)}:{sST+2*(i-2)+1}]")

    a(f".globl {K2}\n.p2align 8\n.type {K2},@function\n{K2}:")
    a(f"  s_cmp_ge_u32 s2, {NB}\n  s_cbranch_scc1 L2_end")
    stamp(0)
    PACK = opt.get("pack", 1)
    PFA = opt.get("pfa", 0); PFB = opt.get("pfb", 0)
    a("  s_load_dwordx2 s[6:7], s[0:1], 80")
    a("  s_load_dwordx2 s[4:5], s[0:1], 0")
    a("  s_load_dwordx4 s[84:87], s[0:1], 40")
    a("  s_load_dwordx4 s[40:43], s[0:1], 56")
    if not PACK: a("  s_load_dwordx2 s[44:45], s[0:1], 32")
    a(f"  v_and_b32 v{vLane}, 63, v0\n  v_lshrrev_b32 v{vT0}, 6, v0\n  v_lshlrev_b32 v{vL16}, 4, v{vLane}")
    a(f"  v_readfirstlane_b32 s{sWAVE}, v{vT0}")
    a(f"  v_lshlrev_b32 v{vT1}, 2, v0\n  v_mov_b32 v{vT2}, 0")
    a(f"  ds_write_b32 v{vT1}, v{vT2} offset:{L_CNT}")
    a(f"  v_cmp_gt_u32 vcc, 16, v0\n  s_and_saveexec_b64 s[{sSAVE}:{sSAVE+1}], vcc")
    a(f"  ds_write_b32 v{vT1}, v{vT2} offset:{L_FLAG}")
    a(f"  s_mov_b64 exec, s[{sSAVE}:{sSAVE+1}]")
    a(f"  v_cmp_gt_u32 vcc, 64, v0\n  s_and_saveexec_b64 s[{sSAVE}:{sSAVE+1}], vcc")
    a(f"  ds_write_b32 v{vT1}, v0 offset:{L_DEG}\n  ds_write_b32 v{vT1}, v{vT2} offset:{L_RANK}")
    a(f"  s_mov_b64 exec, s[{sSAVE}:{sSAVE+1}]")
    a(f"  v_lshrrev_b32 v{vT0}, 2, v0\n  v_and_b32 v{vJ}, 3, v0")
    a(f"  s_and_b32 s{sT0}, s2, 7\n  s_lshl_b32 s{sT0}, s{sT0}, 5\n  s_lshr_b32 s{sT1}, s2, 3\n  s_add_u32 s{sT0}, s{sT0}, s{sT1}\n  s_lshl_b32 s{sT0}, s{sT0}, 2")
    a(f"  v_lshlrev_b32 v{vT3}, 10, v{vT0}\n  v_mul_u32_u24 v{vRecOff}, {CH}, v{vT0}")
    a(f"  s_mul_i32 s{sLISTW}, s{sWAVE}, {CAPW*16}\n  s_add_u32 s{sLISTW}, s{sLISTW}, {L_LIST}")
    a(f"  s_mul_i32 s{sEFLW}, s{sWAVE}, {CAPW*32}\n  s_add_u32 s{sEFLW}, s{sEFLW}, {L_EFL}")
    if PFA + PFB:
        hwslot(a, sPF, sT1)
        a(f"  s_lshl_b32 s{sPF}, s{sPF}, 3\n  s_add_u32 s{sPF}, s{sPF}, s{sWAVE}\n  s_add_u32 s{sPF}, s{sPF}, {R1}\n  s_lshl_b32 s{sPF}, s{sPF}, 10")
    a("  s_waitcnt lgkmcnt(0)")
    srd(a, sOFFSRD, 6, NCH * 1024)
    a(f"  buffer_load_dword v{vOL}, v{vT3}, s[{sOFFSRD}:{sOFFSRD+3}], s{sT0} offen")
    RT = opt.get("rtouch", 0)
    if RT:
        srd(a, sWS, 6, WS_USED)
        a(f"  s_mul_i32 s{sT1}, s{sT0}, 10\n  s_add_u32 s{sT1}, s{sT1}, {RECS}")
        a(f"  v_lshlrev_b32 v{vT0}, 4, v{vRecOff}\n  v_lshlrev_b32 v{vT1}, 7, v{vJ}\n  v_add_u32 v{vT0}, v{vT0}, v{vT1}")
        for k in range(RT):
            off = {1: [-64], 2: [-192, 64], 3: [-64, -320, 192]}[RT][k]
            a(f"  v_add_u32 v{vT1}, {off}, v{vT0}")
            a(f"  buffer_load_dword v{vPF}, v{vT1}, s[{sWS}:{sWS+3}], s{sT1} offen")
    srd(a, sTMP, 84, 16 * C * 2)
    a(f"  s_lshl_b32 s{sT1}, s{sWAVE}, 10\n  s_add_u32 m0, s{sT1}, {L_WRAD}")
    a(f"  s_cmp_ge_u32 s{sWAVE}, 4\n  s_cbranch_scc0 L2_aux_go")
    srd(a, sTMP, 86, 128)
    a(f"  s_mov_b32 s{sT1}, 0\n  s_mov_b32 m0, {L_WRAD+4096}\n  s_mov_b64 exec, 0xff")
    a(f"  s_cmp_eq_u32 s{sWAVE}, 4\n  s_cbranch_scc1 L2_aux_go")
    a(f"  s_movk_i32 s{sT1}, 0x1000")
    a(f"  s_mov_b32 m0, {L_WRAD+4096+128}")
    a("L2_aux_go:")
    a("  s_nop 0")
    a(f"  buffer_load_dwordx4 v{vL16}, s[{sTMP}:{sTMP+3}], s{sT1} offen lds")
    a("  s_mov_b64 exec, -1")
    srd(a, sTMP, 40, C * C * 2)
    a(f"  v_lshlrev_b32 v{vD0}, 4, v0")
    for i in range(4):
        a(f"  s_movk_i32 s{sT1}, {8192*i}")
        a(f"  buffer_load_dwordx4 v[{pM+4*i}:{pM+4*i+3}], v{vD0}, s[{sTMP}:{sTMP+3}], s{sT1} offen")
    srd(a, sX, 4, N * 1024)
    def warm(n):
        for k in range(n):
            a(f"  buffer_load_dwordx4 v[{vPF}:{vPF+3}], v{vL16}, s[{sX}:{sX+3}], s{sPF} offen")
            a(f"  s_add_u32 s{sPF}, s{sPF}, {288*1024}")
    warm(PFA)
    srd(a, sWS, 6, WS_USED)
    srd(a, sOUT, 42, N * 1024)
    sFE = sWS
    if not PACK:
        sFE = 4
        if stamps: a("  s_mov_b32 s100, s6\n  s_mov_b32 s101, s7")
        srd(a, sFE, 44, E * 32)
    a(f"  s_mov_b32 s{sKB}, 0\n  s_mov_b32 s{sSTEP}, {TPC*NR}")
    for r in range(NR):
        a(f"  v_mov_b32 v{pREC+4*r+1}, -1")
    for r in range(48):
        a(f"  v_mov_b32 v{vACC+r}, 0")
    a(f"  s_mov_b32 s{sNLOG}, 0xbfb8aa3b\n  s_mov_b32 s{sNLOG+1}, 0xbfb8aa3b")
    a(f"  s_mov_b32 s{sP1}, 0x05040100\n  s_mov_b32 s{sP2}, 0x07060302")
    a("  s_barrier")
    a(f"  s_waitcnt vmcnt({5 + PFA + RT})")
    stamp(1)
    a(f"  v_lshrrev_b32 v{vLen}, 16, v{vOL}\n  v_and_b32 v{vOL}, 0xffff, v{vOL}")
    a(f"  v_add3_u32 v{vRecOff}, v{vRecOff}, v{vOL}, v{vJ}\n  v_lshlrev_b32 v{vRecOff}, 4, v{vRecOff}")

    STRAIGHT = opt.get("straight", 0)
    def guard(r, label):
        if r >= STRAIGHT: a(f"  s_cmp_eq_u64 s[{sM+2*r}:{sM+2*r+1}], 0\n  s_cbranch_scc1 {label}")
    def rec_masks():
        a(f"  s_add_u32 s{sT0}, s{sKB}, s{sSTEP}")
        a(f"  v_min_u32 v{vRem}, s{sT0}, v{vLen}\n  v_subrev_u32 v{vRem}, s{sKB}, v{vRem}\n  v_sub_u32 v{vRem}, v{vRem}, v{vJ}")
        a(f"  s_lshl_b32 s{sT0}, s{sKB}, 4\n  s_add_u32 s{sT0}, s{sT0}, {RECS}")
        for r in range(NR):
            a(f"  v_cmp_lt_i32 s[{sM+2*r}:{sM+2*r+1}], {TPC*r}, v{vRem}")
        a("  s_nop 3")
    def rec_load(r):
        a(f"  s_mov_b64 exec, s[{sM+2*r}:{sM+2*r+1}]")
        a(f"  buffer_load_dwordx4 v[{pREC+4*r}:{pREC+4*r+3}], v{vRecOff}, s[{sWS}:{sWS+3}], s{sT0} offen offset:{16*TPC*r}")

    rec_masks()
    for r in range(NR):
        a(f"  s_cmp_eq_u64 s[{sM+2*r}:{sM+2*r+1}], 0\n  s_cbranch_scc1 L2_first_done")
        rec_load(r)
    NY = PFB
    a("L2_first_done:")
    a("  s_mov_b64 exec, -1")
    warm(PFB)
    a("L2_stage:")
    a(f"  v_cmp_lt_u32 vcc, {TPC*NR}, v{vLen}\n  s_and_saveexec_b64 s[{sSAVE}:{sSAVE+1}], vcc")
    a(f"  s_cbranch_execz L2_nomax")
    a(f"  v_mov_b32 v{vT1}, {L_FLAG+4}\n  ds_max_u32 v{vT1}, v{vLen}")
    a(f"L2_nomax:")
    a(f"  s_mov_b64 exec, s[{sSAVE}:{sSAVE+1}]")
    a(f"  s_waitcnt vmcnt({NY})")
    stamp(2)
    fstamp(0)
    def touch(tag):
        for r in range(NR):
            guard(r, f"L2_touch_done{tag}")
            a(f"  s_mov_b64 exec, s[{sM+2*r}:{sM+2*r+1}]")
            a(f"  buffer_load_dword v{vPF}, v{pREC+4*r+1}, s[{sFE}:{sFE+3}], 0 offen")
        a(f"L2_touch_done{tag}:")
        a("  s_mov_b64 exec, -1")
    TOUCH = opt.get("touch", 0) if not PACK else 0
    if TOUCH == 1: touch(1)
    a(f"  v_mov_b32 v{vT3}, 64")
    for r in range(NR):
        guard(r, f"L2_deg_done")
        a(f"  s_mov_b64 exec, s[{sM+2*r}:{sM+2*r+1}]")
        a(f"  v_and_b32 v{vT0}, 63, v{pREC+4*r}\n  v_lshlrev_b32 v{vT0}, 2, v{vT0}")
        a(f"  ds_add_u32 v{vT0}, v{vT3} offset:{L_DEG}")
    a("L2_deg_done:")
    a("  s_mov_b64 exec, -1")
    a(f"  v_lshrrev_b32 v{vT0}, 4, v0\n  v_and_b32 v{vT1}, 7, v{vT0}\n  v_lshlrev_b32 v{vT1}, 1, v{vT1}")
    a(f"  v_bfe_u32 v{vT2}, v0, 2, 2\n  v_lshlrev_b32 v{vT2}, 2, v{vT2}\n  v_bfe_u32 v{vD1}, v0, 1, 1\n  v_add_u32 v{vT2}, v{vT2}, v{vD1}")
    a(f"  v_xor_b32 v{vT2}, v{vT2}, v{vT1}\n  v_lshlrev_b32 v{vT2}, 4, v{vT2}\n  v_and_b32 v{vD1}, 1, v0\n  v_lshl_add_u32 v{vT2}, v{vD1}, 3, v{vT2}")
    a(f"  v_lshl_add_u32 v{vT2}, v{vT0}, 8, v{vT2}\n  v_add_u32 v{vT2}, {L_WMIX}, v{vT2}\n  v_xor_b32 v{vT1}, 32, v{vT2}")
    for i in range(4):
        m = pM + 4 * i; e = vZZ + 16 + 4 * (i % 2)
        a(f"  v_perm_b32 v{e}, v{m+1}, v{m}, s{sP1}\n  v_perm_b32 v{e+1}, v{m+3}, v{m+2}, s{sP1}")
        a(f"  v_perm_b32 v{e+2}, v{m+1}, v{m}, s{sP2}\n  v_perm_b32 v{e+3}, v{m+3}, v{m+2}, s{sP2}")
        a(f"  ds_write_b64 v{vT2}, v[{e}:{e+1}] offset:{8192*i}\n  ds_write_b64 v{vT1}, v[{e+2}:{e+3}] offset:{8192*i}")
    a("  s_waitcnt lgkmcnt(0)\n  s_barrier")
    fstamp(1)
    a(f"  v_lshlrev_b32 v{vT0}, 2, v{vLane}\n  s_mul_i32 s{sT0}, s{sWAVE}, 20\n  v_mov_b32 v{vT1}, s{sT0}")
    a(f"  ds_read_b32 v{vT2}, v{vT0} offset:{L_DEG}")
    for j in range(5):
        a(f"  ds_read_b32 v{pKEY+j}, v{vT1} offset:{L_DEG+4*j}")
    a(f"  v_mov_b32 v{vT3}, 0")
    a("  s_waitcnt lgkmcnt(0)")
    for j in range(5):
        a(f"  v_cmp_gt_u32 s[{sW+2*j}:{sW+2*j+1}], v{pKEY+j}, v{vT2}")
    a("  s_nop 1")
    for j in range(5):
        a(f"  v_addc_co_u32 v{vT3}, vcc, 0, v{vT3}, s[{sW+2*j}:{sW+2*j+1}]")
    a(f"  ds_add_u32 v{vT0}, v{vT3} offset:{L_RANK}")
    a("  s_waitcnt lgkmcnt(0)\n  s_barrier")
    fstamp(2)
    a(f"  s_cmp_lg_u32 s{sWAVE}, 0\n  s_cbranch_scc1 L2_pass_keys")
    a(f"  ds_read_b32 v{vT2}, v{vT0} offset:{L_RANK}")
    a(f"  v_cmp_gt_u32 vcc, {NPB}, v{vLane}\n  s_and_saveexec_b64 s[{sSAVE}:{sSAVE+1}], vcc")
    a(f"  s_waitcnt lgkmcnt(0)\n  v_lshlrev_b32 v{vT2}, 2, v{vT2}")
    a(f"  ds_write_b32 v{vT2}, v{vLane} offset:{L_INV}")
    a(f"  s_mov_b64 exec, s[{sSAVE}:{sSAVE+1}]")
    a("  s_branch L2_pass_keys")

    a("L2_pass:")
    rec_masks()
    for r in range(NR):
        a(f"  s_cmp_eq_u64 s[{sM+2*r}:{sM+2*r+1}], 0\n  s_cbranch_scc1 L2_ld_done")
        rec_load(r)
    a("L2_ld_done:")
    a("  s_mov_b64 exec, -1\n  s_waitcnt vmcnt(0)")
    a("L2_pass_keys:")
    for r in range(NR):
        guard(r, f"L2_rk_done")
        a(f"  s_mov_b64 exec, s[{sM+2*r}:{sM+2*r+1}]")
        a(f"  v_and_b32 v{vT0}, 63, v{pREC+4*r}\n  v_lshlrev_b32 v{vT0}, 2, v{vT0}")
        a(f"  ds_read_b32 v{pBASE+r}, v{vT0} offset:{L_RANK}")
    a("L2_rk_done:")
    a(f"  s_mov_b64 exec, -1\n  v_mov_b32 v{vT3}, 1\n  s_waitcnt lgkmcnt(0)")
    for r in range(NR):
        guard(r, f"L2_key_done")
        a(f"  s_mov_b64 exec, s[{sM+2*r}:{sM+2*r+1}]")
        w0 = pREC + 4 * r; rk = pBASE + r
        SN = opt.get("snake", 7)
        if SN == 7: a(f"  v_bfe_i32 v{vT0}, v{rk}, 3, 1\n  v_xor_b32 v{vT0}, v{vT0}, v{rk}\n  v_and_b32 v{vT0}, 7, v{vT0}")
        else: a(f"  v_bfe_i32 v{vT0}, v{rk}, 3, 1\n  v_and_b32 v{vT0}, {SN}, v{vT0}\n  v_xor_b32 v{vT0}, v{vT0}, v{rk}\n  v_and_b32 v{vT0}, 7, v{vT0}")
        a(f"  v_lshrrev_b32 v{vT1}, 18, v{w0}\n  v_min_u32 v{vT1}, 63, v{vT1}\n  v_lshlrev_b32 v{vT1}, 2, v{vT1}")
        a(f"  v_lshl_add_u32 v{pKEY+r}, v{vT0}, 8, v{vT1}")
        a(f"  ds_add_rtn_u32 v{pRANK+r}, v{pKEY+r}, v{vT3} offset:{L_CNT}")
        a(f"  v_and_b32 v{w0}, 0xffffffc0, v{w0}\n  v_and_or_b32 v{w0}, v{rk}, 56, v{w0}")
    a("L2_key_done:")
    a("  s_mov_b64 exec, -1")
    if TOUCH == 2: touch(2)
    a("  s_waitcnt lgkmcnt(0)\n  s_barrier")
    fstamp(3)
    if TOUCH == 3: touch(3)
    a(f"  s_lshl_b32 s{sT0}, s{sWAVE}, 8\n  v_lshl_add_u32 v{vT0}, v{vLane}, 2, s{sT0}")
    a(f"  ds_read_b32 v{vT1}, v{vT0} offset:{L_CNT}\n  s_waitcnt lgkmcnt(0)\n  v_mov_b32 v{vT2}, v{vT1}")
    wave_scan(a, vT2)
    a(f"  v_sub_u32 v{vT1}, v{vT2}, v{vT1}")
    a(f"  v_readlane_b32 s{sN}, v{vT2}, 63")
    a(f"  ds_write_b32 v{vT0}, v{vT1} offset:{L_CNT}")
    a(f"  s_cmp_gt_u32 s{sN}, {CAPFILL}\n  s_cbranch_scc0 L2_noovf")
    a(f"  v_mov_b32 v{vT0}, {L_FLAG}\n  v_mov_b32 v{vT1}, 1\n  ds_write_b32 v{vT0}, v{vT1}")
    a("  s_branch L2_padded")
    a("L2_noovf:")
    a(f"  s_lshl_b32 s{sT0}, s{sN}, 4\n  s_add_u32 s{sT0}, s{sT0}, s{sLISTW}\n  v_add_u32 v{vT0}, s{sT0}, v{vL16}")
    a(f"  v_mov_b32 v{vREC}, {DUMMY_W0}\n  v_mov_b32 v{vREC+1}, {DUMMY_W1}\n  v_mov_b32 v{vREC+2}, 0\n  v_mov_b32 v{vREC+3}, 0")
    a(f"  s_mov_b32 exec_hi, 0\n  ds_write_b128 v{vT0}, v[{vREC}:{vREC+3}]\n  s_mov_b64 exec, -1")
    a("L2_padded:")
    a("  s_waitcnt lgkmcnt(0)\n  s_barrier")
    fstamp(4)
    if TOUCH == 4: touch(4)
    a(f"  v_mov_b32 v{vT0}, {L_FLAG}\n  ds_read_b64 v[{vKPn}:{vKPn+1}], v{vT0}")
    for r in range(NR):
        guard(r, f"L2_base_done")
        a(f"  s_mov_b64 exec, s[{sM+2*r}:{sM+2*r+1}]")
        a(f"  ds_read_b32 v{pBASE+r}, v{pKEY+r} offset:{L_CNT}")
    a("L2_base_done:")
    a("  s_mov_b64 exec, -1\n  s_waitcnt lgkmcnt(0)")
    a(f"  v_readfirstlane_b32 s{sFLAG}, v{vKPn}\n  v_readfirstlane_b32 s{sMAXL}, v{vKPn+1}")
    a(f"  s_cmp_lg_u32 s{sFLAG}, 0\n  s_cbranch_scc1 L2_overflow")
    for r in range(NR):
        guard(r, f"L2_scat_done")
        a(f"  s_mov_b64 exec, s[{sM+2*r}:{sM+2*r+1}]")
        w0 = pREC + 4 * r
        a(f"  v_lshrrev_b32 v{vT0}, 8, v{pKEY+r}\n  v_mul_u32_u24 v{vT0}, {CAPW*16}, v{vT0}")
        a(f"  v_add_u32 v{vT1}, v{pBASE+r}, v{pRANK+r}\n  v_lshl_add_u32 v{vT0}, v{vT1}, 4, v{vT0}")
        a(f"  ds_write_b128 v{vT0}, v[{w0}:{w0+3}] offset:{L_LIST}")
    a("L2_scat_done:")
    a("  s_mov_b64 exec, -1\n  s_waitcnt lgkmcnt(0)\n  s_barrier")
    stamp(3)
    fstamp(5)
    gstamp(0)

    def kcompute(dst, tmp):
        for i in range(4): a(f"  v_dot2_f32_bf16 v{tmp+i}, v{vREC+3}, v{vCG+2*i+1}, 0")
        for i in range(4): a(f"  v_dot2_f32_bf16 v{tmp+i}, v{vREC+2}, v{vCG+2*i}, v{tmp+i}")
        a("  s_nop 2")
        a(f"  v_cvt_pk_bf16_f32 v{dst}, v{tmp}, v{tmp+1}\n  v_cvt_pk_bf16_f32 v{dst+1}, v{tmp+2}, v{tmp+3}")
    def bigm(i, zb):
        t, half = i >> 1, i & 1
        z = vZZ + 32 * zb + 16 * t
        c = "0" if half == 0 else f"v[{z}:{z+15}]"
        A_ = vA + 4 * half; B_ = vWB + (t * 2 + half) * 4
        return f"  v_mfma_f32_32x32x16_bf16 v[{z}:{z+15}], v[{A_}:{A_+3}], v[{B_}:{B_+3}], {c}"
    def aread():
        a(f"  ds_read_b128 v[{vA}:{vA+3}], v{vA1A}\n  ds_read_b128 v[{vA+4}:{vA+7}], v{vA2A}")
        a(f"  v_add_u32 v{vA1A}, v{vA1A}, v{vInc1}\n  v_add_u32 v{vA2A}, v{vA2A}, v{vInc2}")
    def rowload(slot, so):
        a(f"  buffer_load_dwordx4 v[{vROW+4*slot}:{vROW+4*slot+3}], v{vL16}, s[{sX}:{sX+3}], s{so} offen{' nt' if opt.get('xnt') else ''}")
    def rowoff(dst, src):
        if opt.get("nomem"): a(f"  s_and_b32 s{dst}, s{src}, 0x3c00")
        else: a(f"  s_andn2_b32 s{dst}, s{src}, 63")

    if opt.get("prio") == 1:
        a(f"  s_cmp_ge_u32 s{sWAVE}, 4\n  s_cbranch_scc0 L2_noprio\n  s_setprio 1\nL2_noprio:")
    a(f"  s_cmp_eq_u32 s{sN}, 0\n  s_cbranch_scc1 L2_loop_exit")
    a(f"  s_add_u32 s{sG}, s{sN}, 3\n  s_lshr_b32 s{sG}, s{sG}, 2")
    a(f"  v_lshrrev_b32 v{vT0}, 2, v{vLane}\n  v_lshlrev_b32 v{vT0}, 4, v{vT0}\n  v_add_u32 v{vRecA}, s{sLISTW}, v{vT0}")
    a(f"  ds_read_b128 v[{vREC}:{vREC+3}], v{vRecA}")
    a(f"  v_lshrrev_b32 v{vT0}, 1, v{vLane}\n  v_lshlrev_b32 v{vT0}, 4, v{vT0}\n  v_add_u32 v{vT0}, s{sLISTW}, v{vT0}")
    for i in range(4):
        a(f"  ds_read_b32 v{vT+i}, v{vT0} offset:{i*512+4}")
    a(f"  v_and_b32 v{vT1}, 1, v{vLane}\n  v_lshlrev_b32 v{vT1}, 4, v{vT1}")
    a(f"  v_bfe_u32 v{vT2}, v{vLane}, 3, 2\n  v_lshlrev_b32 v{vT2}, 2, v{vT2}\n  v_and_b32 v{vT3}, 3, v{vLane}\n  v_add_u32 v{vT2}, v{vT2}, v{vT3}")
    a(f"  v_lshlrev_b32 v{vT2}, 5, v{vT2}\n  v_lshrrev_b32 v{vT3}, 5, v{vLane}\n  v_lshl_add_u32 v{vT2}, v{vT3}, 4, v{vT2}\n  v_add_u32 v{vT2}, s{sEFLW}, v{vT2}")
    a(f"  v_and_b32 v{vT3}, 4, v{vLane}\n  v_cmp_eq_u32 vcc, 0, v{vT3}")
    a(f"  v_mov_b32 v{vT3}, {L_ZERO}\n  v_mov_b32 v{vInc2}, 512\n  v_mov_b32 v{vW0}, 0")
    a(f"  v_cndmask_b32 v{vA1A}, v{vT3}, v{vT2}, vcc\n  v_cndmask_b32 v{vA2A}, v{vT2}, v{vT3}, vcc")
    a(f"  v_cndmask_b32 v{vInc1}, v{vW0}, v{vInc2}, vcc\n  v_cndmask_b32 v{vInc2}, v{vInc2}, v{vW0}, vcc")
    a(f"  s_mov_b32 s{sT1}, {EFS if PACK else 0}\n  s_mov_b32 m0, s{sEFLW}")
    a(f"  v_lshrrev_b32 v{vT2}, 1, v{vLane}\n  v_mov_b32 v{vT3}, {DUMMY_W1}")
    a("  s_waitcnt lgkmcnt(0)")
    def efdma(i):
        a(f"  v_add_u32 v{vT+4}, {32*i}, v{vT2}\n  v_cmp_gt_u32 vcc, s{sN}, v{vT+4}")
        a(f"  v_add_u32 v{vT+i}, v{vT+i}, v{vT1}")
        a(f"  s_add_u32 m0, s{sEFLW}, {1024*i}")
        a(f"  v_cndmask_b32 v{vT+i}, v{vT3}, v{vT+i}, vcc")
        a(f"  buffer_load_dwordx4 v{vT+i}, s[{sFE}:{sFE+3}], s{sT1} offen {EFPOL} lds")
    a(f"  s_cmp_le_u32 s{sN}, 128\n  s_cbranch_scc1 L2_dma_small")
    a(f"  s_movk_i32 s{sT0}, 128")
    a("L2_dma_more:")
    a(f"  s_lshl_b32 s{sO}, s{sT0}, 4\n  v_add_u32 v{vT+5}, s{sO}, v{vT0}\n  ds_read_b32 v{vT+5}, v{vT+5} offset:4")
    a(f"  s_lshl_b32 s{sO}, s{sT0}, 5\n  s_add_u32 m0, s{sEFLW}, s{sO}\n  s_waitcnt lgkmcnt(0)")
    a(f"  v_add_u32 v{vT+5}, v{vT+5}, v{vT1}")
    a(f"  buffer_load_dwordx4 v{vT+5}, s[{sFE}:{sFE+3}], s{sT1} offen {EFPOL} lds")
    a(f"  s_add_u32 s{sT0}, s{sT0}, 32\n  s_cmp_lt_u32 s{sT0}, s{sN}\n  s_cbranch_scc1 L2_dma_more")
    a("L2_dma_small:")
    gstamp(1)
    efdma(0)
    for j in range(8):
        a(f"  v_readlane_b32 s{sW+j}, v{vREC}, {4*j}")
        rowoff(sO, sW + j)
        rowload(j, sO)
    for i in range(1, 4): efdma(i)
    a(f"  v_mov_b32 v{vW0}, v{vREC}")
    a(f"  v_and_b32 v{vT2}, 3, v{vLane}\n  v_lshlrev_b32 v{vT2}, 1, v{vT2}\n  v_add_u32 v{vT2}, {L_WRAD}, v{vT2}")
    for i in range(4):
        for f in range(4):
            a(f"  ds_read_u16 v{vZZ+16+4*i+f}, v{vT2} offset:{4096+(i*16+f*4)*2}")
    a("  s_waitcnt lgkmcnt(0)")
    for i in range(4):
        a(f"  v_lshl_or_b32 v{vCG+2*i}, v{vZZ+16+4*i+1}, 16, v{vZZ+16+4*i}")
        a(f"  v_lshl_or_b32 v{vCG+2*i+1}, v{vZZ+16+4*i+3}, 16, v{vZZ+16+4*i+2}")
    a(f"  v_lshrrev_b32 v{vT1}, 5, v{vLane}\n  v_lshlrev_b32 v{vT1}, 11, v{vT1}\n  v_and_b32 v{vT2}, 31, v{vLane}\n  v_lshl_add_u32 v{vT1}, v{vT2}, 2, v{vT1}\n  v_add_u32 v{vT1}, {L_WRAD}, v{vT1}")
    for half in range(2):
        for j in range(8):
            a(f"  ds_read_b32 v{pW+8*half+j}, v{vT1} offset:{j*256+half*128}")
    a("  s_waitcnt lgkmcnt(0)")
    for t in range(2):
        for half in range(2):
            for jj in range(4):
                a(f"  v_perm_b32 v{vWB+(t*2+half)*4+jj}, v{pW+8*half+2*jj+1}, v{pW+8*half+2*jj}, s{sP1 if t == 0 else sP2}")
    kcompute(vKP, vTP)
    a(f"  v_add_u32 v{vRecA}, 256, v{vRecA}")
    gstamp(2)
    a("  s_waitcnt vmcnt(11)")
    gstamp(3)
    aread()
    a("  s_waitcnt lgkmcnt(0)")
    for i in range(4): a(bigm(i, 0))
    a("  s_nop 7")
    aread()
    a("  s_nop 7")
    def inter(x, y):
        for i in range(max(len(x), len(y))):
            if i < len(x): a(x[i])
            if i < len(y): a(y[i])
    def batch(cb, first, tail):
        for gi in range(4):
            z0 = vZZ + 32 * cb + 4 * gi; z1 = z0 + 16
            zp = [z0, z0 + 2, z1, z1 + 2]
            nset = (gi + 2) % 4
            if opt.get("prio") == 3:
                a(f"  s_cmp_ge_u32 s{sWAVE}, 4\n  s_cbranch_scc{1 if gi % 2 == 0 else 0} L2_pl_{cb}_{gi}_{int(first)}\n  s_setprio 1\n  s_branch L2_ph_{cb}_{gi}_{int(first)}\nL2_pl_{cb}_{gi}_{int(first)}:\n  s_setprio 0\nL2_ph_{cb}_{gi}_{int(first)}:")
            if opt.get("prio") == 4 and gi == 0:
                a(f"  s_cmp_ge_u32 s{sWAVE}, 4\n  s_cbranch_scc{1 if cb == 0 else 0} L2_pl_{cb}_{gi}_{int(first)}\n  s_setprio 1\n  s_branch L2_ph_{cb}_{gi}_{int(first)}\nL2_pl_{cb}_{gi}_{int(first)}:\n  s_setprio 0\nL2_ph_{cb}_{gi}_{int(first)}:")
            if gi == 0:
                a("  s_waitcnt lgkmcnt(0)")
                a(f"  ds_read_b128 v[{vREC}:{vREC+3}], v{vRecA}")
            if gi == 1:
                a("  s_waitcnt lgkmcnt(0)")
            sm = [f"  v_pk_mul_f32 v[{vT+2*p}:{vT+2*p+1}], v[{zp[p]}:{zp[p]+1}], s[{sNLOG}:{sNLOG+1}]" for p in range(4)]
            ex = [f"  v_exp_f32 v{vT+i}, v{vT+i}" for i in range(8)]
            sa = [f"  v_pk_add_f32 v[{vT+2*p}:{vT+2*p+1}], v[{vT+2*p}:{vT+2*p+1}], 1.0 op_sel_hi:[1,0]" for p in range(4)]
            rc = [f"  v_rcp_f32 v{vT+i}, v{vT+i}" for i in range(8)]
            sr = [f"  v_pk_mul_f32 v[{vRR+2*p}:{vRR+2*p+1}], v[{zp[p]}:{zp[p]+1}], v[{vT+2*p}:{vT+2*p+1}]" for p in range(4)]
            rl = []
            for q in range(4):
                src, ln = (vW0, 4 * (4 * (gi + 2) + q)) if gi < 2 else (vREC, 4 * (4 * (gi - 2) + q))
                rl.append(f"  v_readlane_b32 s{sW+4*nset+q}, v{src}, {ln}")
            tp = []
            for r in range(4):
                sl = (gi % 2) * 4 + r
                for t in range(2):
                    tp.append(f"  v_mfma_f32_4x4x4_16b_bf16 v[{vTP+8*r+4*t}:{vTP+8*r+4*t+3}], v[{vKP}:{vKP+1}], v[{vROW+4*sl+2*t}:{vROW+4*sl+2*t+1}], 0 cbsz:4 abid:{4*gi+r}")
            if opt.get("ab_nosm"):
                sm = []
                ex = [f"  v_exp_f32 v{vT+2*p+h}, v{zp[p]+h}" for p in range(4) for h in range(2)]
            if opt.get("ab_nosilu"): sm = []; ex = ["  s_nop 0"]; sa = []; rc = []; sr = []
            for x in sm: a(x)
            inter(ex, [bigm(gi, 1 - cb)])
            for x in sa: a(x)
            for x in rl: a(x)
            if gi == 1: kcompute(vKPn, vTP)
            a(f"  s_waitcnt vmcnt({7 if (first and gi < 2) else 4})")
            if first and gi == 0: gstamp(4)
            if first and gi == 3: gstamp(5)
            if gi == 3: aread()
            inter(tp, rc)
            LDPOS = opt.get("ldpos", 0)
            def loads():
                for r in range(4): rowoff(sO + r, sW + 4 * nset + r)
                for r in range(4): rowload((gi % 2) * 4 + r, sO + r)
            if LDPOS == 0: loads()
            for x in sr: a(x)
            if LDPOS == 1: loads()
            if LDPOS == 3:
                for r in range(4): rowoff(sO + r, sW + 4 * nset + r)
            for r in range(4):
                a(f"  s_set_gpr_idx_on s{sW+4*gi+r}, gpr_idx(SRC2,DST)" if r == 0 else f"  s_set_gpr_idx_idx s{sW+4*gi+r}")
                for t in range(2):
                    rr = vRR + 4 * t + (r & ~1)
                    sel = "op_sel:[0,1,0] op_sel_hi:[1,1,1]" if r & 1 else "op_sel:[0,0,0] op_sel_hi:[1,0,1]"
                    for h in range(2):
                        d = vACC + 4 * t + 2 * h; tpp = vTP + 8 * r + 4 * t + 2 * h
                        a(f"  v_pk_fma_f32 v[{d}:{d+1}], v[{tpp}:{tpp+1}], v[{rr}:{rr+1}], v[{d}:{d+1}] {sel}")
                if LDPOS == 3: rowload((gi % 2) * 4 + r, sO + r)
            a("  s_set_gpr_idx_off")
            if LDPOS == 2: loads()
            if gi == 3:
                a(f"  v_mov_b32 v{vKP}, v{vKPn}\n  v_mov_b32 v{vKP+1}, v{vKPn+1}\n  v_mov_b32 v{vW0}, v{vREC}")
                a(f"  v_add_u32 v{vRecA}, 256, v{vRecA}")
            a(f"  s_sub_u32 s{sG}, s{sG}, 1\n  s_cmp_eq_u32 s{sG}, 0")
            if gi == 3 and tail: a(f"  s_cbranch_scc0 {tail}")
            else: a("  s_cbranch_scc1 L2_loop_exit")
    batch(0, True, None)
    a("L2_batch1:")
    batch(1, False, None)
    batch(0, False, "L2_batch1")
    a("L2_loop_exit:")
    a("  s_waitcnt vmcnt(0) lgkmcnt(0)")
    stamp(4)
    a(f"  s_add_u32 s{sKB}, s{sKB}, s{sSTEP}\n  s_cmp_lt_u32 s{sKB}, s{sMAXL}\n  s_cbranch_scc0 L2_epilogue")
    a("L2_rezero:")
    a("  s_barrier")
    a(f"  v_lshlrev_b32 v{vT1}, 2, v0\n  v_mov_b32 v{vT2}, 0\n  ds_write_b32 v{vT1}, v{vT2} offset:{L_CNT}")
    a(f"  v_mov_b32 v{vT1}, {L_FLAG}\n  ds_write_b32 v{vT1}, v{vT2}")
    a(f"  v_mov_b32 v{vT1}, {L_FLAG+4}\n  ds_max_u32 v{vT1}, v{vLen}")
    a("  s_waitcnt lgkmcnt(0)\n  s_barrier\n  s_branch L2_pass")
    a("L2_overflow:")
    a(f"  s_mov_b32 s{sSTEP}, 1\n  s_branch L2_rezero")

    a("L2_epilogue:")
    eA = vTP; eBb = [vROW, vROW + 16]; eD = vACC; eP = vZZ
    vAa, vAb, vBa, vBx, vOut, vOut1 = vRecA, vA1A, vA2A, vW0, vInc1, vInc2
    def bload(ct):
        a(f"  v_xor_b32 v{vBx}, {ct*32}, v{vBa}")
        for s in range(4):
            for h in range(2):
                d = eBb[ct % 2] + s * 4 + h * 2
                a(f"  ds_read_b64_tr_b16 v[{d}:{d+1}], v{vBx} offset:{(32*s+16*h)*256}")
    a(f"  v_lshrrev_b32 v{vT1}, 4, v{vLane}\n  v_bfe_u32 v{vT2}, v{vLane}, 2, 2\n  v_lshl_add_u32 v{vT2}, v{vT1}, 2, v{vT2}\n  v_and_b32 v{vT3}, 3, v{vLane}")
    a(f"  v_and_b32 v{vBx}, 7, v{vT2}\n  v_lshlrev_b32 v{vBx}, 1, v{vBx}")
    a(f"  v_lshrrev_b32 v{vBa}, 1, v{vT3}\n  v_xor_b32 v{vBa}, v{vBa}, v{vBx}\n  v_lshlrev_b32 v{vBa}, 4, v{vBa}")
    a(f"  v_and_b32 v{vBx}, 1, v{vT3}\n  v_lshl_add_u32 v{vBa}, v{vBx}, 3, v{vBa}")
    a(f"  v_lshl_add_u32 v{vBa}, v{vT2}, 8, v{vBa}\n  v_add_u32 v{vBa}, {L_WMIX}, v{vBa}")
    bload(0)
    a(f"  v_and_b32 v{vOut}, 1, v{vT1}\n  v_mul_u32_u24 v{vOut}, {opt.get('snake', 7)}, v{vOut}\n  v_xor_b32 v{vOut}, s{sWAVE}, v{vOut}\n  v_lshl_add_u32 v{vOut}, v{vT1}, 3, v{vOut}")
    a(f"  v_lshlrev_b32 v{vOut}, 2, v{vOut}\n  ds_read_b32 v{vOut}, v{vOut} offset:{L_INV}")
    a(f"  s_lshl_b32 s{sT1}, s{sWAVE}, 2\n  v_mov_b32 v{vOut1}, s{sT1}\n  ds_read_b32 v{vOut1}, v{vOut1} offset:{L_INV+128}")
    a(f"  v_add_u32 v{vT0}, s{sEFLW}, v{vL16}")
    for s in range(5):
        b = vACC + 8 * s; p = eP + 4 * s
        for i in range(4): a(f"  v_cvt_pk_bf16_f32 v{p+i}, v{b+2*i}, v{b+2*i+1}")
        a(f"  ds_write_b128 v{vT0}, v[{p}:{p+3}] offset:{s*AGG_STRIDE}")
    bload(1)
    a(f"  v_lshlrev_b32 v{vAa}, 3, v{vT2}\n  v_add_u32 v{vAa}, s{sEFLW}, v{vAa}")
    a(f"  v_mul_u32_u24 v{vAb}, {AGG_STRIDE}, v{vT3}\n  v_add_u32 v{vAb}, v{vAb}, v{vAa}")
    a(f"  s_mul_i32 s{sT0}, s2, 625\n  s_add_u32 s{sT1}, s{sT0}, {625+15}\n  s_add_u32 s{sT0}, s{sT0}, 15")
    a(f"  s_lshr_b32 s{sT0}, s{sT0}, 4\n  s_lshr_b32 s{sT1}, s{sT1}, 4\n  s_sub_u32 s{sT1}, s{sT1}, s{sT0}\n  s_lshl_b32 s{sT0}, s{sT0}, 10")
    a("  s_waitcnt lgkmcnt(8)")
    for tile in range(2):
        for s in range(4):
            for h in range(2):
                d = eA + tile * 16 + s * 4 + h * 2
                if tile == 0: a(f"  ds_read_b64_tr_b16 v[{d}:{d+1}], v{vAb} offset:{(32*s+16*h)*8}")
                else: a(f"  ds_read_b64_tr_b16 v[{d}:{d+1}], v{vAa} offset:{4*AGG_STRIDE+(32*s+16*h)*8}")
    a(f"  v_and_b32 v{vT2}, 15, v{vLane}\n  v_lshlrev_b32 v{vT2}, 4, v{vT2}")
    a(f"  v_cmp_gt_u32 s[{sM}:{sM+1}], s{sT1}, v{vOut}\n  v_cmp_gt_u32 s[{sM+2}:{sM+3}], s{sT1}, v{vOut1}")
    a(f"  v_lshl_add_u32 v{vOut}, v{vOut}, 10, v{vT2}\n  v_lshl_add_u32 v{vOut1}, v{vOut1}, 10, v{vT2}")
    a(f"  s_and_b32 s{sM+2}, s{sM+2}, 0xffff\n  s_mov_b32 s{sM+3}, 0")
    def store_u(u):
        for tile in range(2):
            da = eD + (u % 2) * 16 + tile * 4; db = da + 8; p = vT + 4 * tile
            a(f"  v_cvt_pk_bf16_f32 v{p}, v{da}, v{da+1}\n  v_cvt_pk_bf16_f32 v{p+1}, v{da+2}, v{da+3}")
            a(f"  v_cvt_pk_bf16_f32 v{p+2}, v{db}, v{db+1}\n  v_cvt_pk_bf16_f32 v{p+3}, v{db+2}, v{db+3}")
        a(f"  s_mov_b64 exec, s[{sM}:{sM+1}]")
        a(f"  buffer_store_dwordx4 v[{vT}:{vT+3}], v{vOut}, s[{sOUT}:{sOUT+3}], s{sT0} offen offset:{u*256} {OPOL}")
        a(f"  s_mov_b64 exec, s[{sM+2}:{sM+3}]")
        a(f"  buffer_store_dwordx4 v[{vT+4}:{vT+7}], v{vOut1}, s[{sOUT}:{sOUT+3}], s{sT0} offen offset:{u*256} {OPOL}")
        a("  s_mov_b64 exec, -1")
    for ct in range(8):
        a(f"  s_waitcnt lgkmcnt({8 if 0 < ct < 7 else 0})")
        u = ct // 2
        for tile in range(2):
            d = eD + (u % 2) * 16 + (ct % 2) * 8 + tile * 4
            for s in range(4):
                c = "0" if s == 0 else f"v[{d}:{d+3}]"
                A_ = eA + tile * 16 + s * 4; B_ = eBb[ct % 2] + s * 4
                a(f"  v_mfma_f32_16x16x32_bf16 v[{d}:{d+3}], v[{A_}:{A_+3}], v[{B_}:{B_+3}], {c}")
        if ct + 2 < 8: bload(ct + 2)
        if ct % 2 == 0 and ct > 0: store_u(u - 1)
    a("  s_nop 7")
    store_u(3)
    if stamps:
        stamp(5)
        a("  s_waitcnt lgkmcnt(0)")
        ws0, ws1 = (6, 7) if PACK else (100, 101)
        a(f"  s_mov_b32 s{sOFFSRD}, s{ws0}\n  s_mov_b32 s{sOFFSRD+1}, s{ws1}\n  s_mov_b32 s{sOFFSRD+2}, 0x10000000\n  s_mov_b32 s{sOFFSRD+3}, 0x20000")
        a(f"  s_lshl_b32 s{sT0}, s2, 3\n  s_add_u32 s{sT0}, s{sT0}, s{sWAVE}\n  s_mul_i32 s{sT0}, s{sT0}, 64\n  s_add_u32 s{sT0}, s{sT0}, {STAMP_OFF}")
        a(f"  v_mov_b32 v{vT+2}, 0")
        for i in range(6):
            a(f"  v_mov_b32 v{vT+0}, s{sST+2*i}\n  v_mov_b32 v{vT+1}, s{sST+2*i+1}")
            a(f"  buffer_store_dwordx2 v[{vT}:{vT+1}], v{vT+2}, s[{sOFFSRD}:{sOFFSRD+3}], s{sT0} offen offset:{8*i}")
            a("  s_waitcnt vmcnt(0)")
    a("L2_end:")
    a("  s_endpgm")
    a("L2_text_end:")
    return NV, NS

def build(opt):
    a = A()
    a(f"; @launch kernel={K1} grid=({NCH},1,1) block=({T1},1,1) lds={2048 + CH*16 + (CH*4 + CH*32 if opt.get('pack', 1) else 0)}")
    a(f"; @launch kernel={K2} grid=({NB},1,1) block=(512,1,1) lds={LDS2}")
    a('.amdgcn_target "amdgcn-amd-amdhsa--gfx950"')
    a(".text")
    gen_k1(a, opt)
    nv, ns = gen_k2(a, opt)
    a('.section .rodata,"a"\n.p2align 6')
    a(kd(K1, 56, 64))
    a(".p2align 6")
    a(kd(K2, nv, ns))
    return a.text(), nv

if __name__ == "__main__":
    out = sys.argv[1]
    opt = {}
    for x in sys.argv[2:]:
        k, _, val = x.partition("=")
        opt[k] = int(val) if val else True
    t, nv = build(opt)
    open(out, "w").write(t)
    print("wrote", out, "LDS2 =", LDS2, "NV =", nv)
```
